```python
import torch

def _softmax(x, axis=-1):
    return torch.softmax(x, dim=axis)
def _gelu(x):
    return torch.nn.functional.gelu(x, approximate="tanh")
def _silu(x):
    return torch.nn.functional.silu(x)
def _sigmoid(x):
    return torch.sigmoid(x)
def _layernorm(x, axis=-1, eps=1e-5):
    m = x.mean(dim=axis, keepdim=True)
    v = x.var(dim=axis, keepdim=True, unbiased=False)
    return (x - m) / torch.sqrt(v + eps)
def _scatter_add(tgt, idx, src, axis=0):
    return tgt.clone().index_add_(axis, idx, src)
def _segment_sum(src, seg, n):
    out = torch.zeros((n,) + src.shape[1:], dtype=src.dtype)
    return out.index_add_(0, seg, src)
def _pad(x, pw):
    flat = tuple(v for pair in reversed(pw) for v in pair)
    return torch.nn.functional.pad(x, flat)

kernel_name = 'gated_mix__ssm_conv_s5__linear_kernel_hedgehog__prompt'

def setup_inputs():

    _w = (lambda a: (lambda t: t.to(torch.bfloat16) if t.is_floating_point() else t)(torch.as_tensor(a)))
    def _A_setup():
        B, S, D = 1, 2048, 640
        P = D
        Lambda_re = -0.5 * (lambda _x: torch.exp(torch.as_tensor(_x)))((lambda *s: torch.randn(*s, dtype=torch.bfloat16) * 0.4)(P))
        Lambda_im = (lambda *s: torch.randn(*s, dtype=torch.bfloat16) * 0.4)(P) * 1.0
        B_re = (lambda *s: torch.randn(*s, dtype=torch.bfloat16) * 0.4)(P, D) * (D ** -0.5)
        B_im = (lambda *s: torch.randn(*s, dtype=torch.bfloat16) * 0.4)(P, D) * (D ** -0.5)
        C_re = (lambda *s: torch.randn(*s, dtype=torch.bfloat16) * 0.4)(D, P) * (P ** -0.5)
        C_im = (lambda *s: torch.randn(*s, dtype=torch.bfloat16) * 0.4)(D, P) * (P ** -0.5)
        log_dt = (lambda *s: torch.randn(*s, dtype=torch.bfloat16) * 0.4)(P) * 0.3 - 2.0
        Dskip = (lambda *s: torch.randn(*s, dtype=torch.bfloat16) * 0.05)(D)
        return {
            "x": _w((lambda *s: torch.randn(*s, dtype=torch.bfloat16) * 0.05)(B, S, D)),
            "Lambda_re": _w(Lambda_re),
            "Lambda_im": _w(Lambda_im),
            "B_re": _w(B_re),
            "B_im": _w(B_im),
            "C_re": _w(C_re),
            "C_im": _w(C_im),
            "log_dt": _w(log_dt),
            "Dskip": _w(Dskip),
        }
    _A_in = _A_setup()

    def _B_setup():
        B, S, D, H = 1, 2048, 640, 32
        Dh = D // H
        return {
            "x": _w((lambda *s: torch.randn(*s, dtype=torch.bfloat16) * 0.05)(B, S, D)),
            "wqkv": _w((lambda *s: torch.randn(*s, dtype=torch.bfloat16) * 0.8)(D, 3 * D)),
            "w_phi": _w((lambda *s: torch.randn(*s, dtype=torch.bfloat16) * 0.8)(H, Dh, Dh) * (Dh ** -0.5)),
            "wo": _w((lambda *s: torch.randn(*s, dtype=torch.bfloat16) * 0.05)(D, D)),
        }
    _B_in = _B_setup()

    return {
        "A_x": _A_in["x"],
        "A_Lambda_re": _A_in["Lambda_re"],
        "A_Lambda_im": _A_in["Lambda_im"],
        "A_B_re": _A_in["B_re"],
        "A_B_im": _A_in["B_im"],
        "A_C_re": _A_in["C_re"],
        "A_C_im": _A_in["C_im"],
        "A_log_dt": _A_in["log_dt"],
        "A_Dskip": _A_in["Dskip"],
        "B_x": _B_in["x"],
        "B_wqkv": _B_in["wqkv"],
        "B_w_phi": _B_in["w_phi"],
        "B_wo": _B_in["wo"],
        "gate_w": _w((lambda *s: torch.randn(*s, dtype=torch.bfloat16) * 0.05)(640) * 16.0),
    }

def reference(A_x, A_Lambda_re, A_Lambda_im, A_B_re, A_B_im, A_C_re, A_C_im, A_log_dt, A_Dskip, B_x, B_wqkv, B_w_phi, B_wo, gate_w):
    def _A_ref(x, Lambda_re, Lambda_im, B_re, B_im, C_re, C_im, log_dt, Dskip):
        Bsz, L, H = x.shape
        Lam = Lambda_re + 1j * Lambda_im
        Bmat = B_re + 1j * B_im
        Cmat = C_re + 1j * C_im
        dt = torch.exp(log_dt)
        Lam_bar = torch.exp(dt * Lam)
        B_bar = ((Lam_bar - 1.0) / Lam)[:, None] * Bmat
        Bu = torch.einsum("bld,pd->blp", x + 0j, B_bar)
        h = torch.zeros_like(Bu[:, 0, :])
        hs = []
        for t in range(L):
            h = Lam_bar[None, :] * h + Bu[:, t, :]
            hs.append(h)
        hseq = torch.stack(hs, 1)
        y = 2.0 * torch.einsum("blp,dp->bld", hseq, Cmat).real + x * Dskip[None, None, :]
        return y

    def _B_ref(x, wqkv, w_phi, wo):
        B, S, D = x.shape
        H = 32; Dh = D // H
        qkv = (lambda x, *d: x.permute(*d))((x @ wqkv).reshape(B, S, 3, H, Dh), 2, 0, 3, 1, 4)
        q, k, v = qkv[0], qkv[1], qkv[2]
        pq = torch.einsum("bhsd,hdf->bhsf", q, w_phi)
        pk = torch.einsum("bhsd,hdf->bhsf", k, w_phi)
        phi_q = torch.concatenate([_softmax(pq, axis=-1), _softmax(-pq, axis=-1)], axis=-1)
        phi_k = torch.concatenate([_softmax(pk, axis=-1), _softmax(-pk, axis=-1)], axis=-1)
        kv = torch.einsum("bhsf,bhsd->bhfd", phi_k, v)
        z  = torch.einsum("bhsf->bhf", phi_k)
        num = torch.einsum("bhqf,bhfd->bhqd", phi_q, kv)
        den = torch.einsum("bhqf,bhf->bhq", phi_q, z)[..., None] + 1e-6
        o = num / den
        return (lambda x, *d: x.permute(*d))(o, 0, 2, 1, 3).reshape(B, S, D) @ wo

    x = A_x
    g = _sigmoid((x * gate_w).sum(-1, keepdims=True))
    a = _A_ref(x, A_Lambda_re, A_Lambda_im, A_B_re, A_B_im, A_C_re, A_C_im, A_log_dt, A_Dskip)
    b = _B_ref(x, B_wqkv, B_w_phi, B_wo)
    return g * a + (1 - g) * b
```

```python
import re

def v(i, n=1): return f"v{i}" if n == 1 else f"v[{i}:{i+n-1}]"
def a(i, n=1): return f"a{i}" if n == 1 else f"a[{i}:{i+n-1}]"
def s(i, n=1): return f"s{i}" if n == 1 else f"s[{i}:{i+n-1}]"

_REG = re.compile(r"(?<![\w.])(-?\|?)([vas])(?:(\d+)|\[(\d+):(\d+)\])")
def regs_of(op):
    op = op.strip()
    out = set()
    for m in _REG.finditer(op):
        f = m.group(2)
        if m.group(3) is not None: out.add((f, int(m.group(3))))
        else:
            for r in range(int(m.group(4)), int(m.group(5)) + 1): out.add((f, r))
    if re.search(r"\bvcc\b", op): out.add(("s", "vcc"))
    if re.search(r"\bexec\b", op): out.add(("s", "exec"))
    if re.search(r"\bm0\b", op): out.add(("s", "m0"))
    return out

def split_ops(rest):
    ops, depth, cur = [], 0, ""
    for ch in rest:
        if ch in "[(": depth += 1
        if ch in "])": depth -= 1
        if ch == "," and depth == 0: ops.append(cur.strip()); cur = ""
        else: cur += ch
    if cur.strip(): ops.append(cur.strip())
    return ops

TRANS = ("v_exp_f32", "v_log_f32", "v_rcp_f32", "v_rsq_f32", "v_sqrt_f32", "v_sin_f32", "v_cos_f32", "v_rcp_iflag_f32")
class Ins:
    def __init__(self, text):
        self.text = text
        t = text.split(";")[0].strip()
        self.is_label = t.endswith(":")
        self.mn = t.split()[0] if t and not self.is_label else ""
        rest = t[len(self.mn):].strip() if self.mn else ""
        self.ops = split_ops(rest)
        mn = self.mn
        self.valu = mn.startswith("v_") and not mn.startswith("v_mfma")
        self.mfma = mn.startswith("v_mfma")
        self.vmem = mn.startswith(("buffer_", "global_", "flat_"))
        self.ds = mn.startswith("ds_")
        self.salu = mn.startswith("s_")
        self.trans = any(mn.startswith(x) for x in TRANS)
        self.dpp = ("_dpp" in mn) or (" row_" in t) or ("quad_perm" in t)
        self.permlane = mn.startswith("v_permlane")
        self.readlane = mn.startswith(("v_readlane", "v_readfirstlane"))
        self.passes = 0
        if self.mfma: self.passes = 8 if "32x32" in mn else 4
        self.defs, self.uses = set(), set()
        ops = self.ops
        if self.is_label or not mn: return
        def first_word(o): return o
        if self.mfma:
            self.defs = regs_of(ops[0]); self.srcA = regs_of(ops[1]); self.srcB = regs_of(ops[2]); self.srcC = regs_of(ops[3])
            self.uses = self.srcA | self.srcB | self.srcC
        elif self.valu:
            self.defs = regs_of(ops[0])
            nd = 1
            if mn.startswith(("v_add_co", "v_sub_co", "v_addc_co", "v_subb_co", "v_subrev_co", "v_div_scale", "v_mad_u64")): self.defs |= regs_of(ops[1]); nd = 2
            for o in ops[nd:]: self.uses |= regs_of(o)
            if mn.startswith(("v_fmac", "v_mac", "v_dot2c", "v_writelane")) or self.permlane: self.uses |= regs_of(ops[0])
            if mn.startswith("v_permlane") and "swap" in mn: self.defs |= regs_of(ops[1])
            if mn.startswith("v_cmpx"): self.defs.add(("s", "exec"))
            if mn.startswith("v_cndmask") and len(ops) == 3: self.uses.add(("s", "vcc"))
            if mn.startswith(("v_addc_co", "v_subb_co")): pass
        elif self.vmem:
            isload = "load" in mn
            lds = t.endswith(" lds") or " lds " in t or "_lds_" in mn
            atom = "atomic" in mn
            self.lds_dma = lds
            if mn.startswith(("buffer_inv", "buffer_wbl2")): return
            if isload and not lds:
                self.defs = regs_of(ops[0])
                for o in ops[1:]: self.uses |= regs_of(o)
                if "d16" in mn: self.uses |= regs_of(ops[0])
            elif atom and (" sc0" in t):
                self.defs = regs_of(ops[0])
                for o in ops[1:]: self.uses |= regs_of(o)
                if mn.startswith("buffer"): self.uses |= regs_of(ops[0])
            else:
                for o in ops: self.uses |= regs_of(o)
                if lds: self.uses.add(("s", "m0"))
            self.wide_store = ("store" in mn) and ("x4" in mn or "x3" in mn)
            self.store_data = set()
            if "store" in mn:
                self.store_data = regs_of(ops[0]) if mn.startswith("buffer") else regs_of(ops[1])
        elif self.ds:
            if mn.startswith(("ds_read", "ds_bpermute", "ds_permute", "ds_swizzle")) or "_rtn" in mn:
                self.defs = regs_of(ops[0])
                for o in ops[1:]: self.uses |= regs_of(o)
            else:
                for o in ops: self.uses |= regs_of(o)
        elif self.salu:
            if mn.startswith(("s_cmp", "s_cbranch", "s_branch", "s_waitcnt", "s_barrier", "s_nop", "s_endpgm", "s_sleep", "s_setprio", "s_bitcmp")):
                for o in ops: self.uses |= regs_of(o)
            else:
                self.defs = regs_of(ops[0]) if ops else set()
                for o in ops[1:]: self.uses |= regs_of(o)
                if "saveexec" in mn: self.defs.add(("s", "exec")); self.uses.add(("s", "exec"))
    def states(self):
        if self.mn == "s_nop": return int(self.ops[0], 0) + 1
        return 1

def isv(r): return r[0] in "va"
def need(p, c):
    n = 0
    pv = {r for r in p.defs if isv(r)}; ps = {r for r in p.defs if r[0] == "s"}
    if p.valu:
        if c.mfma and (pv & c.uses): n = max(n, 2)
        if c.mfma and ("s", "exec") in ps: n = max(n, 4)
        if c.valu and p.trans and (pv & c.uses): n = max(n, 1)
        if c.mfma and p.trans and (pv & c.uses): n = max(n, 2)
        if (c.vmem or c.ds) and p.trans and (pv & c.uses): n = max(n, 1)
        if c.readlane and (pv & c.uses): n = max(n, 1)
        if c.permlane and (pv & c.uses): n = max(n, 2)
        if c.valu and c.dpp and (pv & c.uses): n = max(n, 2)
        if c.vmem and (ps & c.uses): n = max(n, 5)
        if c.valu and (ps & c.uses): n = max(n, 4 if c.readlane or c.mn.startswith("v_writelane") else 2)
        if c.salu and (ps & c.uses): n = max(n, 4 if ("s","exec") not in ps else 5)
        if c.valu and c.dpp and ("s", "exec") in ps: n = max(n, 5)
    if p.mfma:
        k = {4: 8, 8: 12}[p.passes]
        if c.mfma:
            if p.defs & (c.srcA | c.srcB): n = max(n, k)
            if p.defs & c.srcC and not (p.defs == c.srcC and p.mn == c.mn): n = max(n, k - 2)
            if (p.defs & c.defs) and not (p.defs == c.defs and p.mn == c.mn): n = max(n, k)
        elif c.valu or c.vmem or c.ds:
            if p.defs & (c.uses | c.defs): n = max(n, k)
        if c.valu and (p.srcC & c.defs): n = max(n, {4: 3, 8: 7}[p.passes])
    if p.vmem and getattr(p, "wide_store", False):
        if (c.valu or c.mfma) and (p.store_data & c.defs): n = max(n, 2)
        elif (c.vmem or c.ds) and (p.store_data & c.defs): n = max(n, 1)
    if p.salu and ("s", "m0") in p.defs:
        if (c.vmem and getattr(c, "lds_dma", False)): n = max(n, 1)
    if p.salu and ("s", "exec") in p.defs and c.valu and c.dpp: n = max(n, 0)
    return n

class Kern:
    def __init__(self, name, nv=256, na=0, ns=102, wgsize=256):
        self.name = name; self.lines = []; self.nv = nv; self.na = na; self.ns = ns; self.uid = 0
    def __call__(self, line):
        for l in line.split("\n"):
            l = l.strip()
            if l: self.lines.append(l)
    def c(self, txt): self.lines.append("; " + txt)
    def label(self, l): self.lines.append(l + ":")
    def newlabel(self, p="L"):
        self.uid += 1; return f"{self.name}_{p}{self.uid}"
    def padded(self):
        out = []; hist = []
        npad = 0
        ins_list = []
        for l in self.lines:
            if l.startswith(";") or l.startswith("."):
                out.append(l); continue
            c = Ins(l)
            if c.is_label:
                out.append(l); ins_list.append(c); continue
            req = 0; dist = 0
            for p in reversed(hist):
                r = need(p, c) - dist
                if r > req: req = r
                dist += p.states()
                if dist >= 20: break
            if req > 0:
                while req > 0:
                    k = min(req, 16)
                    nop = Ins(f"s_nop {k-1}"); out.append(nop.text); hist.append(nop); ins_list.append(nop); req -= k; npad += 1
            out.append(l); hist.append(c); ins_list.append(c)
            if len(hist) > 40: hist = hist[-24:]
        self.npad = npad
        self.check_backedges(ins_list)
        return out
    def check_backedges(self, L):
        pos = {i.text[:-1]: n for n, i in enumerate(L) if i.is_label}
        for n, i in enumerate(L):
            if i.mn.startswith(("s_cbranch", "s_branch")):
                t = pos.get(i.ops[0])
                if t is None: continue
                tail = [x for x in L[max(0, n-24):n+1] if not x.is_label]
                head = [x for x in L[t:t+24] if not x.is_label]
                for hi, c in enumerate(head):
                    dist = sum(x.states() for x in head[:hi])
                    for p in reversed(tail):
                        if need(p, c) > dist:
                            print(f"[hazard across branch to {i.ops[0]}] {p.text}  ->  {c.text} (dist {dist}, need {need(p,c)})")
                        dist += p.states()
                        if dist >= 20: break
    def text(self):
        body = self.padded()
        out = [f".globl {self.name}", ".p2align 8", f".type {self.name},@function", f"{self.name}:"]
        for l in body:
            out.append(l if (l.endswith(":") or l.startswith(".")) else "    " + l)
        return "\n".join(out) + "\n"
    def desc(self):
        acc = (self.nv + 3) // 4 * 4
        tot = acc + self.na if self.na else self.nv
        o = [f".amdhsa_kernel {self.name}", f"  .amdhsa_next_free_vgpr {tot}", f"  .amdhsa_next_free_sgpr {self.ns}",
             f"  .amdhsa_accum_offset {acc}", "  .amdhsa_group_segment_fixed_size 0", "  .amdhsa_kernarg_size 136",
             "  .amdhsa_user_sgpr_count 2", "  .amdhsa_user_sgpr_kernarg_segment_ptr 1", "  .amdhsa_system_sgpr_workgroup_id_x 1",
             "  .amdhsa_float_denorm_mode_32 3", "  .amdhsa_float_denorm_mode_16_64 3", ".end_amdhsa_kernel"]
        return "\n".join(o) + "\n"

def module(header_lines, kerns):
    t = "".join("; " + h + "\n" for h in header_lines)
    t += '.amdgcn_target "amdgcn-amd-amdhsa--gfx950"\n.text\n'
    for k in kerns: t += k.text()
    t += '.section .rodata,"a"\n'
    for k in kerns: t += ".p2align 6\n" + k.desc()
    return t
```

```python
from ag import *
from layout import *
from k3 import srd, Prof

STAGE = 44032
XOFF = 0
L_WPHI, L_ZERO, L_ETAB, L_CTAB, L_CNT, L_COEF = 132096, 135296, 136064, 144256, 152448, 152576
LDS_K1 = 163840
LOG2E = 0x3fb8aa3b
INV2PI = 0x3e22f983

class T:
    def __init__(self, typ):
        self.typ = typ
        if typ == "A":
            self.nT, self.nP, self.p0 = 10, 1, 0
            self.secs = [(1, 16384), (2, 27648)]
            self.wsoff = 38912
        else:
            self.nT, self.nP, self.p0 = 5, 4, 1
            self.secs = [(0, 16384)]
            self.wsoff = 27648
        self.nS = 2*self.nP
        self.ntile = self.nT + self.nS

sW, sC, sHG, sQ = 3, 26, 27, 28
def decode(k):
    k("v_lshrrev_b32 v1, 6, v0\ns_nop 0\nv_readfirstlane_b32 s3, v1")
    k("s_and_b32 s4, s2, 7\ns_lshr_b32 s5, s2, 3")
    k(f"s_and_b32 s6, s4, 1\ns_lshl_b32 s6, s6, 3\ns_and_b32 s7, s5, 7\ns_add_u32 s{sC}, s6, s7")
    k(f"s_lshr_b32 s6, s4, 1\ns_lshl_b32 s6, s6, 2\ns_lshr_b32 s29, s5, 3\ns_add_u32 s{sQ}, s6, s29")
    k(f"s_lshr_b32 s{sHG}, s{sQ}, 1")
    k("s_xor_b32 s30, s7, s29\ns_and_b32 s30, s30, 1\ns_mul_i32 s30, s30, 5")
sROT = 30

def lam_calc(k, lre, lim, ldt, lr, li, t0, t1):
    k(f"v_mul_f32 v{t0}, {LOG2E:#x}, v{ldt}\nv_exp_f32 v{t0}, v{t0}")
    k(f"v_cvt_pk_bf16_f32 v{t0}, v{t0}, v{t0}\nv_lshlrev_b32 v{t0}, 16, v{t0}")
    k(f"v_mul_f32 v{t1}, v{t0}, v{lim}\nv_mul_f32 v{t0}, v{t0}, v{lre}")
    k(f"v_mul_f32 v{t0}, {LOG2E:#x}, v{t0}\nv_exp_f32 v{t0}, v{t0}")
    k(f"v_mul_f32 v{t1}, {INV2PI:#x}, v{t1}\nv_rndne_f32 v{lr}, v{t1}\nv_sub_f32 v{t1}, v{t1}, v{lr}")
    k(f"v_cos_f32 v{lr}, v{t1}\nv_sin_f32 v{li}, v{t1}")
    k(f"v_mul_f32 v{lr}, v{lr}, v{t0}\nv_mul_f32 v{li}, v{li}, v{t0}")

def csquare(k, r, i, t):
    k(f"v_mul_f32 v{t}, v{i}, v{i}\nv_mul_f32 v{i}, v{r}, v{i}\nv_fma_f32 v{r}, v{r}, v{r}, -v{t}\nv_add_f32 v{i}, v{i}, v{i}")

def load_lam_inputs(k, voff, d0, d1, d2, sA, sB, sC_):
    k(f"buffer_load_ushort v{d0}, v{voff}, {s(sA,4)}, 0 offen\nbuffer_load_ushort v{d1}, v{voff}, {s(sB,4)}, 0 offen\nbuffer_load_ushort v{d2}, v{voff}, {s(sC_,4)}, 0 offen")

def lds_wait(k, addr_v, tmp_v, target, tmps):
    l = k.newlabel("spin"); d = k.newlabel("spun")
    k.label(l)
    k(f"ds_read_b32 v{tmp_v}, v{addr_v}\ns_waitcnt lgkmcnt(0)\nv_readfirstlane_b32 s{tmps}, v{tmp_v}")
    k(f"s_cmp_ge_u32 s{tmps}, {target}\ns_cbranch_scc1 {d}\ns_sleep 1\ns_branch {l}")
    k.label(d)

def lds_signal(k, addr_v, one_v):
    k("s_mov_b64 s[60:61], exec\ns_mov_b64 exec, 1")
    k(f"ds_add_u32 v{addr_v}, v{one_v}")
    k("s_mov_b64 exec, s[60:61]")

def gen_loader(k, t, name, P):
    L = f"{name}_ld{t.typ}"
    sX, sWQ, sBS = 8, 12, 16
    sG, sL = 32, 44
    sKx, sKq, sSt, sIt, sT0, sT1, sV = 56, 57, 58, 59, 62, 63, 31
    vLane, vXo, vSo, vQo = 2, 3, 4, 6
    k.label(L)
    k(f"s_sub_u32 s{sV}, s{sW}, 4")
    k(f"s_load_dwordx2 s[24:25], s[0:1], {A_X}\ns_load_dwordx2 s[6:7], s[0:1], {A_WQKV}")
    k(f"s_load_dwordx2 s[20:21], s[0:1], {A_BRE}\ns_load_dwordx2 s[22:23], s[0:1], {A_BIM}")
    k(f"v_and_b32 v{vLane}, 63, v0")
    k(f"v_lshrrev_b32 v12, 3, v{vLane}\nv_and_b32 v13, 3, v12")
    k(f"v_and_b32 v14, 1, v13\nv_lshlrev_b32 v14, 2, v14\nv_lshrrev_b32 v15, 1, v13\nv_add_u32 v14, v14, v15")
    k(f"v_lshrrev_b32 v15, 5, v{vLane}\nv_lshl_add_u32 v14, v15, 3, v14")
    k(f"s_and_b32 s{sT0}, s{sV}, 1")
    k(f"s_lshl_b32 s{sT1}, s{sT0}, 4\nv_add_u32 v14, s{sT1}, v14")
    k(f"s_lshr_b32 s{sT1}, s{sV}, 1\ns_lshl_b32 s{sT1}, s{sT1}, 1\nv_add_u32 v14, s{sT1}, v14")
    k(f"v_mul_u32_u24 v14, 1280, v14")
    k(f"s_lshl_b32 s{sT1}, s{sT0}, 2\nv_lshrrev_b32 v15, 4, v{vLane}\nv_add_u32 v15, s{sT1}, v15")
    k(f"v_and_b32 v16, 7, v{vLane}\nv_xor_b32 v15, v15, v16\nv_lshlrev_b32 v15, 4, v15")
    k(f"v_add_u32 v{vXo}, v14, v15")
    k(f"s_lshl_b32 s{sT1}, s{sT0}, 3\nv_add_u32 v14, s{sT1}, v12\nv_mul_u32_u24 v14, 1280, v14\nv_add_u32 v{vSo}, v14, v15")
    nq = 3 if t.typ == "B" else 6
    for j in range(nq):
        k(f"s_add_u32 s{sT0}, s{sV}, {4*j}")
        if t.typ == "A":
            k(f"s_sub_u32 s{sT1}, s{sT0}, 11\ns_cmp_ge_u32 s{sT0}, 11\ns_cselect_b32 s{sT0}, s{sT1}, s{sT0}")
            k(f"s_cselect_b32 s4, 1, 0\ns_mul_i32 s{sG+5+j}, s4, 1280\ns_add_u32 s{sG+5+j}, s{sG+5+j}, 1280\ns_mul_i32 s{sL+5+j}, s4, 11264\ns_add_u32 s{sL+5+j}, s{sL+5+j}, 16384")
            gi = 5 + j
        else:
            gi = 8 + j
            k(f"s_mov_b32 s{sG+gi}, 0\ns_mov_b32 s{sL+gi}, 16384")
        k(f"s_lshl_b32 s{sT1}, s{sT0}, 10\ns_add_u32 s{sL+gi}, s{sL+gi}, s{sT1}")
        k(f"s_mul_i32 s{sT1}, s{sHG}, 160\ns_add_u32 s{sG+gi}, s{sG+gi}, s{sT1}")
        k(f"s_lshl_b32 s{sT0}, s{sT0}, 6\nv_add_u32 v12, s{sT0}, v{vLane}")
        k(f"v_mul_u32_u24 v13, 745, v12\nv_lshrrev_b32 v13, 16, v13")
        k(f"v_mul_u32_u24 v14, 88, v13\nv_sub_u32 v14, v12, v14")
        k(f"v_mul_u32_u24 v15, 205, v14\nv_lshrrev_b32 v15, 11, v15")
        k(f"v_mul_u32_u24 v16, 10, v15\nv_sub_u32 v16, v14, v16")
        k(f"v_lshl_add_u32 v15, v13, 3, v15\nv_mul_u32_u24 v15, 3840, v15\nv_lshl_add_u32 v15, v16, 4, v15")
        k(f"v_cmp_gt_u32 vcc, 80, v14\nv_mov_b32 v16, 0x7fffffff\nv_cndmask_b32 v{vQo+j}, v16, v15, vcc")
    k(f"s_mul_i32 s{sT0}, s{sC}, 163840")
    for n in range(4):
        k(f"s_add_u32 s{sG+n}, s{sT0}, {n*40960}")
        k(f"s_lshl_b32 s{sL+n}, s{sV}, 10\ns_add_u32 s{sL+n}, s{sL+n}, {n*4096}")
    k(f"s_mul_i32 s{sT0}, s{sHG}, {80*1280}")
    for n in range(t.nP):
        k(f"s_add_u32 s{sG+4+n}, s{sT0}, {16*(t.p0+n)*1280}")
        k(f"s_lshl_b32 s{sL+4+n}, s{sV}, 10\ns_add_u32 s{sL+4+n}, s{sL+4+n}, {t.wsoff + n*4096}")
    k(f"s_lshl_b32 s{sKx}, s{sROT}, 7\ns_mul_i32 s{sKq}, s{sROT}, 245760\ns_mov_b32 s{sSt}, 0")
    k("s_waitcnt lgkmcnt(0)")
    srd(k, sX, 24, 2621440); srd(k, sWQ, 6, 2457600)
    k(f"s_cmp_ge_u32 s{sV}, 2\ns_cselect_b32 s{sBS}, s22, s20\ns_cselect_b32 s{sBS+1}, s23, s21\ns_and_b32 s{sBS+1}, s{sBS+1}, 0xffff")
    k(f"s_mov_b32 s{sBS+2}, 819200\ns_mov_b32 s{sBS+3}, 0x20000")
    def issue():
        items = [(n, sX, vXo, sKx) for n in range(4)] + [(4+n, sBS, vSo, sKx) for n in range(t.nP)]
        base = 4 + t.nP
        items += [(base + j, sWQ, vQo + j, sKq) for j in range(nq)]
        for idx, (gi, rs, vo, sk) in enumerate(items):
            last = idx == len(items) - 1
            if last:
                sk_l = k.newlabel("skipdma")
                k(f"s_cmp_ge_u32 s{sV}, {3 if t.typ == 'B' else 2}\ns_cbranch_scc1 {sk_l}")
            k(f"s_add_u32 s{sT0}, s{sG+gi}, s{sk}\ns_add_u32 m0, s{sL+gi}, s{sSt}")
            k(f"buffer_load_dwordx4 v{vo}, {s(rs,4)}, s{sT0} offen lds")
            if last: k.label(sk_l)
        k(f"s_add_u32 s{sKx}, s{sKx}, 128\ns_add_u32 s{sKq}, s{sKq}, 245760\ns_cmp_ge_u32 s{sKx}, 1280")
        k(f"s_cselect_b32 s{sKx}, 0, s{sKx}\ns_cselect_b32 s{sKq}, 0, s{sKq}")
        k(f"s_add_u32 s{sSt}, s{sSt}, {STAGE}\ns_cmp_ge_u32 s{sSt}, {3*STAGE}\ns_cselect_b32 s{sSt}, 0, s{sSt}")
    for _ in range(3): issue()
    k("s_waitcnt vmcnt(20)\ns_barrier")
    lp = k.newlabel("ldloop")
    k(f"s_mov_b32 s{sIt}, 0")
    k.label(lp)
    k("s_waitcnt vmcnt(10)\ns_barrier")
    issue()
    k(f"s_add_u32 s{sIt}, s{sIt}, 1\ns_cmp_lt_u32 s{sIt}, 7\ns_cbranch_scc1 {lp}")
    k("s_waitcnt vmcnt(10)\ns_barrier\ns_waitcnt vmcnt(0)\ns_barrier\ns_barrier")
    P.stamp()

class CR:
    def __init__(self, t):
        self.ACC = 0
        self.WF = 104
        self.XF = 156
        self.aX0, self.aX1, self.aW0, self.aW1, self.aT = 172, 173, 174, 175, 176
        self.LAM = 178
        self.vLane, self.vN, self.vG, self.vTid = 194, 195, 196, 197
        self.EA = 198
        self.TMP = 206
        self.t = t
    def accT(self, tt, i): return self.ACC + (tt*2 + i)*4
    def accS(self, u, i): return self.ACC + ((self.t.nT + u)*2 + i)*4

def gen_mainloop(k, t, R):
    sSt, sIt, sD, sN = 58, 59, 62, 63
    def reads(tile, st):
        w = R.WF + 4*tile
        if tile < t.nT:
            off = t.secs[tile // 5][1] + 5632*st + 8*(tile % 5)
            return [f"ds_read_b64_tr_b16 {v(w,2)}, v{R.aT} offset:{off}", f"ds_read_b64_tr_b16 {v(w+2,2)}, v{R.aT} offset:{off+640}"]
        u = tile - t.nT
        return [f"ds_read_b128 {v(w,4)}, v{R.aW0 if st == 0 else R.aW1} offset:{t.wsoff + 2048*u}"]
    def xreads(st):
        return [f"ds_read_b128 {v(R.XF + 8*st + 4*i, 4)}, v{R.aX0 if st == 0 else R.aX1} offset:{2048*i}" for i in range(2)]
    def mfmas(tile, st):
        out = []
        for i in range(2):
            x = v(R.XF + 8*st + 4*i, 4); w = v(R.WF + 4*tile, 4)
            if tile < t.nT:
                d = v(R.accT(tile, i), 4); out.append(f"v_mfma_f32_16x16x32_bf16 {d}, {w}, {x}, {d}")
            else:
                d = v(R.accS(tile - t.nT, i), 4); out.append(f"v_mfma_f32_16x16x32_bf16 {d}, {x}, {w}, {d}")
        return out
    NB = 3
    seq = []
    seq += [("rd", r, ("x", 1)) for r in xreads(1)]
    for tile in range(t.ntile):
        seq.append(("mm", tile, 0))
        seq += [("rd", r, ("w", tile, 1)) for r in reads(tile, 1)]
    for tile in range(NB): seq.append(("mm", tile, 1))
    seq.append(("bar",))
    seq += [("rd", r, ("x", 0)) for r in xreads(0)]
    for tile in range(NB): seq += [("rd", r, ("w", tile, 0)) for r in reads(tile, 0)]
    for tile in range(NB, t.ntile):
        seq.append(("mm", tile, 1))
        seq += [("rd", r, ("w", tile, 0)) for r in reads(tile, 0)]
    init = [r for r in xreads(0)]
    for tile in range(t.ntile): init += reads(tile, 0)
    for r in init: k(r)
    def counts():
        q = [("x", 0)]*2
        for tile in range(t.ntile): q += [("w", tile, 0)]*len(reads(tile, 0))
        res = []
        for it in range(2):
            res = []
            for e in seq:
                if e[0] == "rd": q.append(e[2])
                elif e[0] == "bar": q = []
                else:
                    need_tags = {("w", e[1], e[2]), ("x", e[2])}
                    last = max([i for i, tg in enumerate(q) if tg in need_tags], default=-1)
                    res.append(len(q) - 1 - last if last >= 0 else None)
                    if last >= 0: q = q[last+1:]
        return res
    cnt = counts()
    lp = k.newlabel("main")
    k(f"s_mov_b32 s{sIt}, 0\ns_mov_b32 s{sSt}, 0")
    k.label(lp)
    ci = 0
    for e in seq:
        if e[0] == "rd": k(e[1])
        elif e[0] == "bar":
            k("s_waitcnt lgkmcnt(0)\ns_barrier")
            k(f"s_add_u32 s{sN}, s{sSt}, {STAGE}\ns_cmp_ge_u32 s{sN}, {3*STAGE}\ns_cselect_b32 s{sN}, 0, s{sN}\ns_sub_u32 s{sD}, s{sN}, s{sSt}\ns_mov_b32 s{sSt}, s{sN}")
            for r in (R.aX0, R.aX1, R.aW0, R.aW1, R.aT): k(f"v_add_u32 v{r}, s{sD}, v{r}")
        else:
            c = cnt[ci]; ci += 1
            if c is not None: k(f"s_waitcnt lgkmcnt({min(c, 15)})")
            for m in mfmas(e[1], e[2]): k(m)
    k(f"s_add_u32 s{sIt}, s{sIt}, 1\ns_cmp_lt_u32 s{sIt}, 10\ns_cbranch_scc1 {lp}")
    k("s_waitcnt lgkmcnt(0)")

def gen_compute_prologue(k, t, R, sWS):
    sLR, sLI, sLD, sWP = 8, 12, 16, 20
    k(f"s_load_dwordx2 s[4:5], s[0:1], {A_LRE}\ns_load_dwordx2 s[6:7], s[0:1], {A_LIM}")
    k(f"s_load_dwordx2 s[32:33], s[0:1], {A_LOGDT}\ns_load_dwordx2 s[34:35], s[0:1], {A_WPHI}\ns_load_dwordx2 s[36:37], s[0:1], {A_WS}")
    k(f"v_mov_b32 v{R.vTid}, v0\nv_and_b32 v{R.vLane}, 63, v0\nv_and_b32 v{R.vN}, 15, v0\nv_bfe_u32 v{R.vG}, v0, 4, 2")
    k("s_waitcnt lgkmcnt(0)")
    srd(k, sLR, 4, 1280); srd(k, sLI, 6, 1280); srd(k, sLD, 32, 1280); srd(k, sWP, 34, 25600); srd(k, sWS, 36, WS_SIZE)
    T0 = R.TMP
    k(f"v_lshlrev_b32 v{T0}, 4, v{R.vTid}\ns_mul_i32 s4, s{sHG}, 3200")
    k(f"v_cmp_gt_u32 vcc, 200, v{R.vTid}\nv_mov_b32 v{T0+1}, 0x7fffffff\nv_cndmask_b32 v{T0+1}, v{T0+1}, v{T0}, vcc")
    k(f"buffer_load_dwordx4 {v(T0+4,4)}, v{T0+1}, {s(sWP,4)}, s4 offen")
    for p in range(t.nP):
        k(f"s_mul_i32 s4, s{sHG}, 160\ns_add_u32 s4, s4, {32*(t.p0+p)}\nv_lshl_add_u32 v{T0+2}, v{R.vN}, 1, s4")
        load_lam_inputs(k, T0+2, T0+8+3*p, T0+9+3*p, T0+10+3*p, sLR, sLI, sLD)
    for r in range(8*t.ntile): k(f"v_mov_b32 v{R.ACC+r}, 0")
    k(f"v_lshrrev_b32 v{T0+2}, 1, v{R.vN}\nv_xor_b32 v{T0+2}, v{T0+2}, v{R.vG}")
    k(f"v_lshlrev_b32 v{T0+3}, 7, v{R.vN}")
    k(f"v_lshl_add_u32 v{R.aW0}, v{T0+2}, 4, v{T0+3}\nv_xor_b32 v{T0+2}, 4, v{T0+2}\nv_lshl_add_u32 v{R.aW1}, v{T0+2}, 4, v{T0+3}")
    k(f"s_lshl_b32 s4, s{sW}, 12\nv_add_u32 v{R.aX0}, s4, v{R.aW0}\nv_add_u32 v{R.aX1}, s4, v{R.aW1}")
    k(f"v_lshrrev_b32 v{T0+2}, 2, v{R.vN}\nv_lshl_add_u32 v{T0+2}, v{R.vG}, 3, v{T0+2}\nv_mul_u32_u24 v{T0+2}, 160, v{T0+2}")
    k(f"v_lshl_add_u32 v{T0+2}, v{R.vG}, 7, v{T0+2}\nv_and_b32 v{T0+3}, 3, v{R.vN}\nv_mul_u32_u24 v{T0+3}, 40, v{T0+3}\nv_add_u32 v{R.aT}, v{T0+2}, v{T0+3}")
    k(f"v_mov_b32 v{T0+24}, 0\nv_mov_b32 v{T0+25}, 0\nv_mov_b32 v{T0+26}, 0\nv_mov_b32 v{T0+27}, 0")
    k(f"v_lshlrev_b32 v{T0+2}, 4, v{R.vTid}\nv_add_u32 v{T0+2}, {L_ZERO}, v{T0+2}")
    k(f"v_cmp_gt_u32 vcc, 48, v{R.vTid}\nv_mov_b32 v{T0+3}, {L_CNT}\nv_cndmask_b32 v{T0+2}, v{T0+3}, v{T0+2}, vcc")
    k(f"ds_write_b128 v{T0+2}, {v(T0+24,4)}")
    k("s_waitcnt vmcnt(0)")
    k(f"v_add_u32 v{T0}, {L_WPHI}, v{T0}\nv_mov_b32 v{T0+1}, {L_CNT + 64}")
    k(f"v_cmp_gt_u32 vcc, 200, v{R.vTid}\nv_cndmask_b32 v{T0}, v{T0+1}, v{T0}, vcc")
    k(f"ds_write_b128 v{T0}, {v(T0+4,4)}")
    for p in range(t.nP):
        a0, a1, a2 = T0+8+3*p, T0+9+3*p, T0+10+3*p
        for x in (a0, a1, a2): k(f"v_lshlrev_b32 v{x}, 16, v{x}")
        lr, li = R.LAM + 4*p, R.LAM + 4*p + 1
        lam_calc(k, a0, a1, a2, lr, li, T0+2, T0+3)
        k(f"v_mov_b32 v{lr+2}, v{lr}\nv_mov_b32 v{lr+3}, v{li}")
        csquare(k, lr+2, lr+3, T0+2); csquare(k, lr+2, lr+3, T0+2)
    k("s_waitcnt lgkmcnt(0)")

def u_pair(R, p, step, im):
    return R.accS(2*p + im, step >> 1) + 2*(step & 1)

def gen_stageA(k, t, R):
    T0 = R.TMP
    k(f"s_lshl_b32 s4, s{sW}, 2\nv_add_u32 v{T0}, s4, v{R.vG}\nv_lshlrev_b32 v{T0}, 9, v{T0}\nv_lshl_add_u32 v{T0}, v{R.vN}, 3, v{T0}\nv_add_u32 v{T0}, {L_ETAB}, v{T0}")
    for p in range(t.nP):
        lam = R.LAM + 4*p
        H = T0 + 2
        HR, HI = u_pair(R, p, 0, 0), u_pair(R, p, 0, 1)
        for st in range(1, 4):
            a_, b_ = T0 + 2 + 4*(st & 1), T0 + 4 + 4*(st & 1)
            tm = T0 + 12
            k(f"v_pk_fma_f32 {v(tm,2)}, {v(lam,2)}, {v(HR,2)}, {v(u_pair(R,p,st,0),2)} op_sel_hi:[0,1,1]")
            k(f"v_pk_fma_f32 {v(tm+2,2)}, {v(lam,2)}, {v(HI,2)}, {v(u_pair(R,p,st,1),2)} op_sel_hi:[0,1,1]")
            k(f"v_pk_fma_f32 {v(a_,2)}, {v(lam,2)}, {v(HI,2)}, {v(tm,2)} op_sel:[1,0,0] op_sel_hi:[1,1,1] neg_lo:[1,0,0] neg_hi:[1,0,0]")
            k(f"v_pk_fma_f32 {v(b_,2)}, {v(lam,2)}, {v(HR,2)}, {v(tm+2,2)} op_sel:[1,0,0] op_sel_hi:[1,1,1]")
            HR, HI = a_, b_
        ea = R.EA + 2*p
        k(f"v_mov_b32 v{ea}, v{HR}\nv_mov_b32 v{ea+1}, v{HI}")
        e = T0 + 16
        k(f"v_fma_f32 v{e}, v{lam+2}, v{HR}, v{HR+1}\nv_fma_f32 v{e+1}, v{lam+2}, v{HI}, v{HI+1}")
        k(f"v_fma_f32 v{e}, -v{lam+3}, v{HI}, v{e}\nv_fma_f32 v{e+1}, v{lam+3}, v{HR}, v{e+1}")
        k(f"ds_write_b64 v{T0}, {v(e,2)} offset:{128*p}")
    k("s_waitcnt lgkmcnt(0)")
    k(f"v_mov_b32 v{T0}, {L_CNT}\nv_mov_b32 v{T0+1}, 1")
    lds_signal(k, T0, T0+1)

def gen_features(k, t, R, i, src_tile0, PH):
    T0 = R.TMP
    QB = R.WF
    AOP = R.WF + 12
    PV = R.WF + 36
    aW = T0 + 20
    for tt in range(5):
        a0 = R.accT(src_tile0 + tt, i)
        k(f"v_cvt_pk_bf16_f32 v{QB+2*tt}, v{a0}, v{a0+1}\nv_cvt_pk_bf16_f32 v{QB+2*tt+1}, v{a0+2}, v{a0+3}")
    for z in (QB+10, QB+11, AOP+10, AOP+11, AOP+22, AOP+23): k(f"v_mov_b32 v{z}, 0")
    def rd(it):
        b = AOP + 12*(it & 1)
        for m in range(2):
            for h in range(2): k(f"ds_read_b64_tr_b16 {v(b + 4*m + 2*h, 2)}, v{aW} offset:{40*(8*m + 4*h) + 8*it}")
        k(f"ds_read_b64_tr_b16 {v(b + 8, 2)}, v{aW} offset:{40*16 + 8*it}")
    rd(0)
    for it in range(5):
        if it < 4: rd(it + 1)
        k(f"s_waitcnt lgkmcnt({5 if it < 4 else 0})")
        b = AOP + 12*(it & 1); d = v(PV + 4*it, 4)
        k(f"v_mfma_f32_16x16x32_bf16 {d}, {v(b,4)}, {v(QB,4)}, 0")
        k(f"v_mfma_f32_16x16x32_bf16 {d}, {v(b+4,4)}, {v(QB+4,4)}, {d}")
        k(f"v_mfma_f32_16x16x32_bf16 {d}, {v(b+8,4)}, {v(QB+8,4)}, {d}")
    MX, MN = T0 + 2, T0 + 3
    k(f"v_max3_f32 v{MX}, v{PV}, v{PV+1}, v{PV+2}\nv_min3_f32 v{MN}, v{PV}, v{PV+1}, v{PV+2}")
    for j in range(3, 19, 2): k(f"v_max3_f32 v{MX}, v{MX}, v{PV+j}, v{PV+j+1}\nv_min3_f32 v{MN}, v{MN}, v{PV+j}, v{PV+j+1}")
    k(f"v_max_f32 v{MX}, v{MX}, v{PV+19}\nv_min_f32 v{MN}, v{MN}, v{PV+19}")
    CL, BPm = T0 + 4, T0 + 6
    k(f"v_mov_b32 v{CL}, {LOG2E:#x}\nv_mul_f32 v{BPm}, v{CL}, v{MX}\nv_mul_f32 v{BPm+1}, v{CL}, v{MN}")
    EP = QB
    EM = T0 + 24
    for j in range(0, 20, 2):
        k(f"v_pk_fma_f32 {v(EP+j,2)}, {v(PV+j,2)}, {v(CL,2)}, {v(BPm,2)} op_sel_hi:[1,0,0] neg_lo:[0,0,1] neg_hi:[0,0,1]")
        k(f"v_pk_fma_f32 {v(EM+j,2)}, {v(PV+j,2)}, {v(CL,2)}, {v(BPm,2)} op_sel:[0,0,1] op_sel_hi:[1,0,1] neg_lo:[1,0,0] neg_hi:[1,0,0]")
    for j in range(20): k(f"v_exp_f32 v{EP+j}, v{EP+j}\nv_exp_f32 v{EM+j}, v{EM+j}")
    SP, SM = T0 + 8, T0 + 10
    k(f"v_pk_add_f32 {v(SP,2)}, {v(EP,2)}, {v(EP+2,2)}\nv_pk_add_f32 {v(SM,2)}, {v(EM,2)}, {v(EM+2,2)}")
    for j in range(4, 20, 2): k(f"v_pk_add_f32 {v(SP,2)}, {v(SP,2)}, {v(EP+j,2)}\nv_pk_add_f32 {v(SM,2)}, {v(SM,2)}, {v(EM+j,2)}")
    k(f"v_add_f32 v{SP}, v{SP}, v{SP+1}\nv_add_f32 v{SM}, v{SM}, v{SM+1}\nv_rcp_f32 v{SP}, v{SP}\nv_rcp_f32 v{SM}, v{SM}")
    for j in range(0, 20, 2):
        k(f"v_pk_mul_f32 {v(EP+j,2)}, {v(EP+j,2)}, {v(SP,2)} op_sel_hi:[1,0]\nv_pk_mul_f32 {v(EM+j,2)}, {v(EM+j,2)}, {v(SM,2)} op_sel_hi:[1,0]")
    for j in range(10): k(f"v_cvt_pk_bf16_f32 v{PH+j}, v{EP+2*j}, v{EP+2*j+1}")
    for j in range(10): k(f"v_cvt_pk_bf16_f32 v{PH+10+j}, v{EM+2*j}, v{EM+2*j+1}")

def feat_addr(k, R):
    T0 = R.TMP
    k(f"v_and_b32 v{T0+2}, 3, v{R.vN}\nv_lshrrev_b32 v{T0+3}, 2, v{R.vN}")
    k(f"v_mul_u32_u24 v{T0+20}, 800, v{T0+2}\nv_mul_u32_u24 v{T0+3}, 40, v{T0+3}\nv_add_u32 v{T0+20}, v{T0+20}, v{T0+3}\nv_add_u32 v{T0+20}, {L_WPHI}, v{T0+20}")
    k(f"v_cmp_eq_u32 vcc, v{T0+2}, v{R.vG}\nv_mov_b32 v{T0+3}, {L_ZERO}\nv_cndmask_b32 v{T0+20}, v{T0+3}, v{T0+20}, vcc")

def tok_local(k, R, i, dst, tmp):
    k(f"v_lshrrev_b32 v{dst}, 2, v{R.vN}\nv_lshlrev_b32 v{dst}, 3, v{dst}\nv_and_b32 v{tmp}, 1, v{R.vN}\nv_lshl_add_u32 v{dst}, v{tmp}, 2, v{dst}")
    k(f"v_bfe_u32 v{tmp}, v{R.vN}, 1, 1\nv_add_u32 v{dst}, v{dst}, v{tmp}")
    if i: k(f"v_add_u32 v{dst}, {2*i}, v{dst}")

def gen_stageB(k, t, R, sWS, trbase):
    T0 = R.TMP
    k(f"v_mov_b32 v{T0}, {L_CNT + 8}")
    lds_wait(k, T0, T0+1, 1, 4)
    aC, aTW, aTR, vSt = T0, T0 + 1, T0 + 2, T0 + 3
    k(f"s_lshl_b32 s4, s{sW}, 2\nv_add_u32 v{aC}, s4, v{R.vG}\nv_lshlrev_b32 v{aC}, 9, v{aC}\nv_lshl_add_u32 v{aC}, v{R.vN}, 3, v{aC}\nv_add_u32 v{aC}, {L_CTAB}, v{aC}")
    CV = R.WF
    for p in range(t.nP): k(f"ds_read_b64 {v(CV+2*p,2)}, v{aC} offset:{128*p}")
    k(f"s_mul_i32 s4, s{sW}, {t.nP*2560}\ns_add_u32 s4, s4, {trbase}")
    k(f"v_mul_u32_u24 v{aTW}, 80, v{R.vN}\nv_lshl_add_u32 v{aTW}, v{R.vG}, 4, v{aTW}\nv_add_u32 v{aTW}, s4, v{aTW}")
    k(f"v_lshrrev_b32 v{aTR}, 2, v{R.vN}\nv_lshl_add_u32 v{aTR}, v{R.vG}, 3, v{aTR}\nv_mul_u32_u24 v{aTR}, 80, v{aTR}\nv_and_b32 v{vSt}, 3, v{R.vN}\nv_lshl_add_u32 v{aTR}, v{vSt}, 3, v{aTR}\nv_add_u32 v{aTR}, s4, v{aTR}")
    k(f"v_lshlrev_b32 v{vSt}, 4, v{R.vLane}")
    k("s_waitcnt lgkmcnt(0)")
    H = T0 + 4
    tm = T0 + 8
    PK = T0 + 12
    for p in range(t.nP):
        lam = R.LAM + 4*p; c = CV + 2*p; ea = R.EA + 2*p
        k(f"v_mov_b32 v{H}, v{c}\nv_mov_b32 v{H+2}, v{c+1}")
        k(f"v_fma_f32 v{H+1}, v{lam+2}, v{c}, v{ea}\nv_fma_f32 v{H+3}, v{lam+2}, v{c+1}, v{ea+1}")
        k(f"v_fma_f32 v{H+1}, -v{lam+3}, v{c+1}, v{H+1}\nv_fma_f32 v{H+3}, v{lam+3}, v{c}, v{H+3}")
        HR, HI = H, H + 2
        for st in range(4):
            ur, ui = u_pair(R, p, st, 0), u_pair(R, p, st, 1)
            k(f"v_pk_fma_f32 {v(tm,2)}, {v(lam,2)}, {v(HR,2)}, {v(ur,2)} op_sel_hi:[0,1,1]")
            k(f"v_pk_fma_f32 {v(tm+2,2)}, {v(lam,2)}, {v(HI,2)}, {v(ui,2)} op_sel_hi:[0,1,1]")
            k(f"v_pk_fma_f32 {v(ur,2)}, {v(lam,2)}, {v(HI,2)}, {v(tm,2)} op_sel:[1,0,0] op_sel_hi:[1,1,1] neg_lo:[1,0,0] neg_hi:[1,0,0]")
            k(f"v_pk_fma_f32 {v(ui,2)}, {v(lam,2)}, {v(HR,2)}, {v(tm+2,2)} op_sel:[1,0,0] op_sel_hi:[1,1,1]")
            HR, HI = ur, ui
        for im in range(2):
            r = [u_pair(R, p, st, im) for st in range(4)]
            b = PK + 4*im
            k(f"v_cvt_pk_bf16_f32 v{b}, v{r[0]}, v{r[1]}\nv_cvt_pk_bf16_f32 v{b+1}, v{r[2]}, v{r[3]}")
            k(f"v_cvt_pk_bf16_f32 v{b+2}, v{r[0]+1}, v{r[1]+1}\nv_cvt_pk_bf16_f32 v{b+3}, v{r[2]+1}, v{r[3]+1}")
            k(f"ds_write_b128 v{aTW}, {v(b,4)} offset:{p*2560 + im*1280}")
    k("s_waitcnt lgkmcnt(0)")
    FR = R.WF + 8
    k(f"s_lshl_b32 s4, s{sC}, 3\ns_lshl_b32 s5, s{sW}, 1\ns_add_u32 s4, s4, s5\ns_mul_i32 s4, s4, 40960")
    k(f"s_mul_i32 s5, s{sHG}, 5\ns_add_u32 s5, s5, {t.p0}\ns_lshl_b32 s5, s5, 10\ns_add_u32 s4, s4, s5\ns_add_u32 s4, s4, {WS_S}")
    n = 0
    for p in range(t.nP):
        for i2 in range(2):
            f = FR + 4*n; n += 1
            k(f"ds_read_b64_tr_b16 {v(f,2)}, v{aTR} offset:{p*2560 + 32*i2}\nds_read_b64_tr_b16 {v(f+2,2)}, v{aTR} offset:{p*2560 + 32*i2 + 320}")
    n = 0
    for p in range(t.nP):
        for i2 in range(2):
            f = FR + 4*n
            k(f"s_waitcnt lgkmcnt({min(15, 2*(2*t.nP - 1 - n))})")
            k(f"s_add_u32 s5, s4, {i2*40960 + p*1024}")
            k(f"buffer_store_dwordx4 {v(f,4)}, v{vSt}, {s(sWS,4)}, s5 offen")
            n += 1

def gen_compute(k, t, name, P, stop=None):
    R = CR(t)
    sWS = 40
    k.label(f"{name}_cp{t.typ}")
    gen_compute_prologue(k, t, R, sWS)
    P.stamp()
    k("s_barrier")
    P.stamp()
    gen_mainloop(k, t, R)
    P.stamp()
    k("s_nop 7")
    if stop == "acc":
        k(f"s_lshl_b32 s4, s2, 2\ns_add_u32 s4, s4, s{sW}\ns_lshl_b32 s4, s4, 15\ns_add_u32 s4, s4, 0x2000000")
        k(f"s_mov_b32 s{sWS+2}, 0x4000000")
        k(f"v_lshlrev_b32 v{R.TMP}, 9, v{R.vLane}")
        for r in range(0, 8*t.ntile, 4): k(f"buffer_store_dwordx4 {v(r,4)}, v{R.TMP}, {s(sWS,4)}, s4 offen offset:{4*r}")
        k(f"s_branch {name}_end")
        return
    gen_stageA(k, t, R)
    P.stamp()
    feat_addr(k, R)
    T0 = R.TMP
    if t.typ == "B":
        PH = R.XF - 4
        for i in range(2):
            gen_features(k, t, R, i, 0, PH)
            tok_local(k, R, i, T0+2, T0+3)
            k(f"v_lshlrev_b32 v{T0+2}, 4, v{T0+2}\nv_mul_u32_u24 v{T0+3}, {32*5120}, v{R.vG}\nv_add_u32 v{T0+2}, v{T0+2}, v{T0+3}")
            k(f"s_lshl_b32 s4, s{sHG}, 7\ns_lshl_b32 s5, s{sC}, 1\ns_add_u32 s4, s4, s5\ns_lshr_b32 s5, s{sW}, 1\ns_add_u32 s4, s4, s5\ns_mul_i32 s4, s4, 5120")
            k(f"s_and_b32 s5, s{sW}, 1\ns_lshl_b32 s5, s5, 9\ns_add_u32 s4, s4, s5\ns_add_u32 s4, s4, {WS_PQ}\ns_add_u32 s5, s4, 4096")
            for m in range(4): k(f"buffer_store_dwordx4 {v(PH+4*m,4)}, v{T0+2}, {s(sWS,4)}, s4 offen offset:{1024*m}")
            k(f"buffer_store_dwordx4 {v(PH+16,4)}, v{T0+2}, {s(sWS,4)}, s5 offen")
            k("s_nop 1")
        P.stamp()
        gen_stageB(k, t, R, sWS, 0)
    else:
        PH = R.XF - 4
        VP = R.WF + 20
        for i in range(2):
            gen_features(k, t, R, i, 0, PH)
            for tt in range(5):
                a0 = R.accT(5 + tt, i)
                k(f"v_cvt_pk_bf16_f32 v{VP+2*tt}, v{a0}, v{a0+1}\nv_cvt_pk_bf16_f32 v{VP+2*tt+1}, v{a0+2}, v{a0+3}")
            k(f"v_mov_b32 v{VP+10}, 0x3f80\nv_mov_b32 v{VP+11}, 0")
            tok_local(k, R, i, T0+2, T0+3)
            k(f"s_lshl_b32 s4, s{sW}, 5\nv_add_u32 v{T0+2}, s4, v{T0+2}\nv_mul_u32_u24 v{T0+2}, 144, v{T0+2}\nv_mul_u32_u24 v{T0+3}, 18432, v{R.vG}\nv_add_u32 v{T0+2}, v{T0+2}, v{T0+3}")
            for j in range(5): k(f"ds_write_b128 v{T0+2}, {v(PH+4*j,4)} offset:{16*j}")
            for j in range(3): k(f"ds_write_b128 v{T0+2}, {v(VP+4*j,4)} offset:{80+16*j}")
            k("s_waitcnt lgkmcnt(0)")
        k(f"v_mov_b32 v{T0}, {L_CNT + 4}\nv_mov_b32 v{T0+1}, 1")
        lds_signal(k, T0, T0+1)
        lds_wait(k, T0, T0+1, 4, 4)
        P.stamp()
        aK = T0 + 2
        k(f"v_lshrrev_b32 v{aK}, 2, v{R.vN}\nv_lshl_add_u32 v{aK}, v{R.vG}, 3, v{aK}\nv_mul_u32_u24 v{aK}, 144, v{aK}\nv_and_b32 v{T0+3}, 3, v{R.vN}\nv_lshl_add_u32 v{aK}, v{T0+3}, 3, v{aK}")
        k(f"s_mul_i32 s4, s{sW}, 18432\nv_add_u32 v{aK}, s4, v{aK}")
        KD = R.WF
        OPS = R.WF + 24
        def rdk(ks):
            b = OPS + 20*(ks & 1)
            for o, off in enumerate((0, 32, 64, 80, 112)):
                k(f"ds_read_b64_tr_b16 {v(b+4*o,2)}, v{aK} offset:{ks*4608 + off}\nds_read_b64_tr_b16 {v(b+4*o+2,2)}, v{aK} offset:{ks*4608 + off + 576}")
        rdk(0)
        for ks in range(4):
            if ks < 3: rdk(ks + 1)
            k(f"s_waitcnt lgkmcnt({10 if ks < 3 else 0})")
            b = OPS + 20*(ks & 1)
            for ft in range(3):
                for vt in range(2):
                    d = v(KD + 4*(ft*2 + vt), 4)
                    k(f"v_mfma_f32_16x16x32_bf16 {d}, {v(b+4*ft,4)}, {v(b+12+4*vt,4)}, {d if ks else 0}")
        vo = T0 + 4
        k(f"v_mul_u32_u24 v{vo}, 80, v{R.vN}\nv_lshl_add_u32 v{vo}, v{R.vG}, 3, v{vo}\nv_mov_b32 v{vo+4}, 0x7fffffff")
        k(f"v_cmp_gt_u32 vcc, 5, v{R.vN}\nv_cndmask_b32 v{vo+1}, v{vo+4}, v{vo}, vcc")
        k(f"v_cmp_gt_u32 vcc, 2, v{R.vG}\nv_cndmask_b32 v{vo+2}, v{vo+4}, v{vo}, vcc\nv_cndmask_b32 v{vo+3}, v{vo+4}, v{vo+1}, vcc")
        k(f"s_lshl_b32 s4, s{sHG}, 2\ns_add_u32 s4, s4, s{sW}\ns_lshl_b32 s4, s4, 4\ns_add_u32 s4, s4, s{sC}\ns_lshl_b32 s4, s4, 11\ns_add_u32 s4, s4, {WS_KVP}")
        for ft in range(3):
            for vt in range(2):
                d = KD + 4*(ft*2 + vt); pk = T0 + 10 + 2*((ft*2 + vt) & 1)
                k(f"v_cvt_pk_bf16_f32 v{pk}, v{d}, v{d+1}\nv_cvt_pk_bf16_f32 v{pk+1}, v{d+2}, v{d+3}")
                k(f"buffer_store_dwordx2 {v(pk,2)}, v{vo + vt + (2 if ft == 2 else 0)}, {s(sWS,4)}, s4 offen offset:{vt*1280 + 32*ft}")
        P.stamp()
        gen_stageB(k, t, R, sWS, 73728)
    P.stamp()
    k(f"s_branch {name}_fin")

def gen_helper(k, t, name):
    sLR, sLI, sLD, sWS, sDBG = 8, 12, 16, 20, 24
    k(f"s_load_dwordx2 s[4:5], s[0:1], {A_LRE}\ns_load_dwordx2 s[6:7], s[0:1], {A_LIM}")
    k(f"s_load_dwordx2 s[32:33], s[0:1], {A_LOGDT}\ns_load_dwordx2 s[36:37], s[0:1], {A_WS}\ns_load_dwordx2 s[{sDBG}:{sDBG+1}], s[0:1], {A_DBG}")
    k("s_waitcnt lgkmcnt(0)")
    srd(k, sLR, 4, 1280); srd(k, sLI, 6, 1280); srd(k, sLD, 32, 1280); srd(k, sWS, 36, WS_SIZE)
    vCh, vP = 20, 21
    k(f"v_and_b32 v{vCh}, {63 if t.typ == 'B' else 15}, v0")
    k(f"s_mul_i32 s4, s{sHG}, 80\ns_add_u32 s4, s4, {16*t.p0}\nv_add_u32 v{vP}, s4, v{vCh}")
    k(f"v_lshlrev_b32 v22, 1, v{vP}")
    load_lam_inputs(k, 22, 23, 24, 25, sLR, sLI, sLD)
    k("s_waitcnt vmcnt(0)")
    for x in (23, 24, 25): k(f"v_lshlrev_b32 v{x}, 16, v{x}")
    L8, L128 = 26, 28
    lam_calc(k, 23, 24, 25, L8, L8+1, 30, 31)
    for _ in range(3): csquare(k, L8, L8+1, 30)
    k(f"v_mov_b32 v{L128}, v{L8}\nv_mov_b32 v{L128+1}, v{L8+1}")
    for _ in range(4): csquare(k, L128, L128+1, 30)
    k(f"v_mov_b32 v30, {L_CNT}")
    lds_wait(k, 30, 31, 4, 4)
    E = 32
    k(f"v_lshlrev_b32 v30, 3, v{vCh}\nv_add_u32 v31, {L_CTAB}, v30\nv_add_u32 v30, {L_ETAB}, v30")
    for sg in range(16): k(f"ds_read_b64 {v(E+2*sg,2)}, v30 offset:{512*sg}")
    def cmad(d, lam, a_, b_):
        k(f"v_fma_f32 v64, v{lam}, v{a_}, v{b_}\nv_fma_f32 v65, v{lam}, v{a_+1}, v{b_+1}")
        k(f"v_fma_f32 v64, -v{lam+1}, v{a_+1}, v64\nv_fma_f32 v{d+1}, v{lam+1}, v{a_}, v65\nv_mov_b32 v{d}, v64")
    A = 66
    k("s_waitcnt lgkmcnt(0)")
    k(f"v_mov_b32 v{A}, v{E}\nv_mov_b32 v{A+1}, v{E+1}")
    for sg in range(1, 16): cmad(A, L8, A, E + 2*sg)
    k(f"v_lshlrev_b32 v68, 3, v{vP}\ns_mul_i32 s4, s{sC}, 5120\ns_add_u32 s4, s4, {WS_E}")
    if t.typ == "A":
        k("v_and_b32 v69, 63, v0\nv_cmp_gt_u32 vcc, 16, v69\nv_mov_b32 v69, 0x7fffffff\nv_cndmask_b32 v69, v69, v68, vcc")
    else: k("v_mov_b32 v69, v68")
    k(f"buffer_store_dwordx2 {v(A,2)}, v69, {s(sWS,4)}, s4 offen sc1")
    k("s_waitcnt vmcnt(0)")
    k(f"s_lshl_b32 s4, s{sQ}, 2\nv_mov_b32 v70, s4\nv_mov_b32 v71, 1")
    k("s_mov_b64 s[60:61], exec\ns_mov_b64 exec, 1")
    k(f"global_atomic_add v70, v71, {s(sDBG,2)} sc1")
    k("s_mov_b64 exec, s[60:61]")
    l1, l2 = k.newlabel("poll"), k.newlabel("polled")
    k.label(l1)
    k(f"global_load_dword v71, v70, {s(sDBG,2)} sc1\ns_waitcnt vmcnt(0)\nv_readfirstlane_b32 s4, v71")
    k(f"s_cmp_ge_u32 s4, 16\ns_cbranch_scc1 {l2}\ns_sleep 2\ns_branch {l1}")
    k.label(l2)
    B0 = 72
    for cc in range(15):
        k(f"s_mov_b32 s4, {WS_E + cc*5120}\nbuffer_load_dwordx2 {v(B0+2*cc,2)}, v68, {s(sWS,4)}, s4 offen sc1")
    k(f"v_mov_b32 v{A}, 0\nv_mov_b32 v{A+1}, 0\ns_waitcnt vmcnt(0)")
    ld = k.newlabel("lbdone")
    for cc in range(15):
        k(f"s_cmp_le_u32 s{sC}, {cc}\ns_cbranch_scc1 {ld}")
        cmad(A, L128, A, B0 + 2*cc)
    k.label(ld)
    for sg in range(16):
        k(f"ds_write_b64 v31, {v(A,2)} offset:{512*sg}")
        if sg < 15: cmad(A, L8, A, E + 2*sg)
    k("s_waitcnt lgkmcnt(0)")
    k(f"v_mov_b32 v30, {L_CNT + 8}\nv_mov_b32 v31, 1")
    lds_signal(k, 30, 31)

def gen_side(k, name):
    sWS, sA, sB_, sLR, sLI, sLD = 8, 12, 16, 20, 32, 36
    sJob, sT0, sT1, sK, sNT = 44, 45, 46, 47, 48
    lw, lg, done = f"{name}_sideW", f"{name}_sideG", f"{name}_fin"
    k(f"s_load_dwordx2 s[4:5], s[0:1], {A_WS}")
    k(f"s_mul_i32 s{sJob}, s2, 3\ns_add_u32 s{sJob}, s{sJob}, s{sW}\ns_sub_u32 s{sJob}, s{sJob}, 5")
    k("v_and_b32 v2, 63, v0\nv_and_b32 v3, 15, v0\nv_bfe_u32 v4, v0, 4, 2\nv_lshlrev_b32 v5, 4, v2")
    k("s_waitcnt lgkmcnt(0)"); srd(k, sWS, 4, WS_SIZE)
    k(f"s_cmp_ge_u32 s{sJob}, 400\ns_cbranch_scc1 {lw}")
    k(f"s_load_dwordx2 s[4:5], s[0:1], {A_CRE}\ns_load_dwordx2 s[6:7], s[0:1], {A_CIM}\ns_load_dwordx2 s[50:51], s[0:1], {A_LRE}")
    k(f"s_load_dwordx2 s[52:53], s[0:1], {A_LIM}\ns_load_dwordx2 s[54:55], s[0:1], {A_LOGDT}")
    k(f"s_mul_i32 s{sT0}, s{sJob}, 1639\ns_lshr_b32 s{sT0}, s{sT0}, 16\ns_mul_i32 s{sK}, s{sT0}, 40\ns_sub_u32 s{sK}, s{sJob}, s{sK}\ns_lshl_b32 s{sNT}, s{sT0}, 2")
    k("s_waitcnt lgkmcnt(0)")
    srd(k, sA, 4, 819200); srd(k, sB_, 6, 819200); srd(k, sLR, 50, 1280); srd(k, sLI, 52, 1280); srd(k, sLD, 54, 1280)
    k(f"s_lshl_b32 s{sT0}, s{sK}, 5\nv_lshl_add_u32 v6, v3, 1, s{sT0}")
    load_lam_inputs(k, 6, 7, 8, 9, sLR, sLI, sLD)
    k(f"v_mul_u32_u24 v10, 1280, v3\nv_and_b32 v11, 1, v4\nv_lshl_add_u32 v10, v11, 4, v10")
    k(f"s_mul_i32 s{sT1}, s{sNT}, {16*1280}\ns_add_u32 s{sT1}, s{sT1}, s{sT0}")
    for j in range(4):
        k(f"s_add_u32 s{sT0}, s{sT1}, {j*16*1280}")
        k(f"buffer_load_dwordx4 {v(32+8*j,4)}, v10, {s(sA,4)}, s{sT0} offen\nbuffer_load_dwordx4 {v(36+8*j,4)}, v10, {s(sB_,4)}, s{sT0} offen")
    k("s_waitcnt vmcnt(8)")
    for x in (7, 8, 9): k(f"v_lshlrev_b32 v{x}, 16, v{x}")
    lam_calc(k, 7, 8, 9, 12, 13, 14, 15)
    k("v_add_f32 v12, -1.0, v12\nv_mul_f32 v14, v7, v7\nv_fmac_f32 v14, v8, v8\nv_rcp_f32 v14, v14")
    k("v_mul_f32 v16, v12, v7\nv_fmac_f32 v16, v13, v8\nv_mul_f32 v17, v13, v7\nv_fma_f32 v17, -v12, v8, v17")
    k("v_add_f32 v14, v14, v14\nv_mul_f32 v16, v16, v14\nv_mul_f32 v17, v17, v14")
    k(f"s_sub_u32 s{sT0}, s{sW}, 5\ns_lshl_b32 s{sT0}, s{sT0}, 7\ns_add_u32 s{sT0}, s{sT0}, {L_COEF}")
    k(f"v_lshl_add_u32 v18, v3, 3, s{sT0}\nds_write_b64 v18, v[16:17]")
    k(f"v_lshl_add_u32 v18, v11, 6, s{sT0}\ns_waitcnt lgkmcnt(0)")
    for j in range(4): k(f"ds_read_b128 {v(64+4*j,4)}, v18 offset:{16*j}")
    k("v_cmp_gt_u32 vcc, 2, v4")
    k("s_waitcnt lgkmcnt(0)")
    for c in range(8):
        cr, ci = 64 + 2*c, 65 + 2*c
        k(f"v_sub_f32 v20, 0, v{ci}\nv_sub_f32 v21, 0, v{cr}\nv_cndmask_b32 v{cr}, v20, v{cr}, vcc\nv_cndmask_b32 v{ci}, v21, v20, vcc")
    k("s_waitcnt vmcnt(0)")
    k(f"s_mul_i32 s{sT0}, s{sNT}, 40\ns_add_u32 s{sT0}, s{sT0}, s{sK}\ns_lshl_b32 s{sT0}, s{sT0}, 10\ns_add_u32 s{sT0}, s{sT0}, {WS_CF}")
    for j in range(4):
        for c in range(8):
            re, im = 32 + 8*j + (c >> 1), 36 + 8*j + (c >> 1)
            if c & 1: k(f"v_and_b32 v20, 0xffff0000, v{re}\nv_and_b32 v21, 0xffff0000, v{im}")
            else: k(f"v_lshlrev_b32 v20, 16, v{re}\nv_lshlrev_b32 v21, 16, v{im}")
            k(f"v_mul_f32 v{80+c}, v{64+2*c}, v20\nv_fmac_f32 v{80+c}, v{65+2*c}, v21")
        o = 88 + 4*(j & 1)
        for c in range(4): k(f"v_cvt_pk_bf16_f32 v{o+c}, v{80+2*c}, v{81+2*c}")
        k(f"s_add_u32 s{sT1}, s{sT0}, {j*40960}\nbuffer_store_dwordx4 {v(o,4)}, v5, {s(sWS,4)}, s{sT1} offen")
    k(f"s_branch {done}")
    k.label(lw)
    k(f"s_cmp_ge_u32 s{sJob}, 600\ns_cbranch_scc1 {lg}")
    k(f"s_load_dwordx2 s[4:5], s[0:1], {A_WO}")
    k(f"s_sub_u32 s{sJob}, s{sJob}, 400\ns_mul_i32 s{sT0}, s{sJob}, 3277\ns_lshr_b32 s{sT0}, s{sT0}, 16\ns_mul_i32 s{sK}, s{sT0}, 20\ns_sub_u32 s{sK}, s{sJob}, s{sK}\ns_lshl_b32 s{sNT}, s{sT0}, 2")
    k("s_waitcnt lgkmcnt(0)"); srd(k, sA, 4, 819200)
    k(f"s_lshr_b32 s{sT0}, s{sK}, 1\ns_mul_i32 s{sT0}, s{sT0}, 80\ns_and_b32 s{sT1}, s{sK}, 1\ns_lshl_b32 s{sT1}, s{sT1}, 3\ns_add_u32 s{sT0}, s{sT0}, s{sT1}")
    k(f"s_sub_u32 s{sT1}, s{sK}, 16\ns_mul_i32 s{sT1}, s{sT1}, 160\ns_add_u32 s{sT1}, s{sT1}, 16")
    k(f"s_cmp_lt_u32 s{sK}, 16\ns_cselect_b32 s{sT0}, s{sT0}, s{sT1}\ns_cselect_b32 s49, 4, 80")
    k(f"v_mul_u32_u24 v10, {20*1280}, v4\nv_lshl_add_u32 v10, v3, 1, v10")
    k(f"s_mul_i32 s{sT0}, s{sT0}, 1280\ns_lshl_b32 s{sT1}, s{sNT}, 5\ns_add_u32 s{sT0}, s{sT0}, s{sT1}\ns_mul_i32 s49, s49, 1280")
    for t4 in range(4):
        for j in range(8):
            d = 32 + 8*t4 + j
            if j < 4: k(f"s_add_u32 s{sT1}, s{sT0}, {j*1280 + t4*32}")
            else: k(f"s_add_u32 s{sT1}, s{sT0}, s49\ns_add_u32 s{sT1}, s{sT1}, {(j-4)*1280 + t4*32}")
            k(f"buffer_load_ushort v{d}, v10, {s(sA,4)}, s{sT1} offen")
    k(f"s_mul_i32 s{sT0}, s{sNT}, 20\ns_add_u32 s{sT0}, s{sT0}, s{sK}\ns_lshl_b32 s{sT0}, s{sT0}, 10\ns_add_u32 s{sT0}, s{sT0}, {WS_WF}")
    k("s_waitcnt vmcnt(0)")
    for t4 in range(4):
        for c in range(4): k(f"v_lshl_or_b32 v{64+4*t4+c}, v{33+8*t4+2*c}, 16, v{32+8*t4+2*c}")
        k(f"s_add_u32 s{sT1}, s{sT0}, {t4*20480}\nbuffer_store_dwordx4 {v(64+4*t4,4)}, v5, {s(sWS,4)}, s{sT1} offen")
    k(f"s_branch {done}")
    k.label(lg)
    k(f"s_cmp_ge_u32 s{sJob}, 728\ns_cbranch_scc1 {done}")
    k(f"s_load_dwordx2 s[4:5], s[0:1], {A_X}\ns_load_dwordx2 s[6:7], s[0:1], {A_GATE}")
    k(f"s_sub_u32 s{sJob}, s{sJob}, 600\ns_mul_i32 s{sT0}, s{sJob}, {16*1280}")
    k("s_waitcnt lgkmcnt(0)"); srd(k, sA, 4, 2621440); srd(k, sB_, 6, 1280)
    k("v_mul_u32_u24 v10, 1280, v3\nv_mul_u32_u24 v11, 320, v4\nv_add_u32 v10, v10, v11")
    for c in range(20):
        k(f"buffer_load_dwordx4 {v(32+4*c,4)}, v10, {s(sA,4)}, s{sT0} offen offset:{16*c}")
        k(f"buffer_load_dwordx4 {v(112+4*c,4)}, v11, {s(sB_,4)}, 0 offen offset:{16*c}")
    k("v_mov_b32 v12, 0\nv_mov_b32 v13, 0\ns_waitcnt vmcnt(0)")
    for r in range(80):
        k(f"v_lshlrev_b32 v14, 16, v{32+r}\nv_lshlrev_b32 v15, 16, v{112+r}\nv_fmac_f32 v12, v14, v15")
        k(f"v_and_b32 v14, 0xffff0000, v{32+r}\nv_and_b32 v15, 0xffff0000, v{112+r}\nv_fmac_f32 v13, v14, v15")
    k("v_add_f32 v12, v12, v13")
    k("v_mov_b32 v13, v12\ns_nop 1\nv_permlane32_swap_b32 v12, v13\ns_nop 1\nv_add_f32 v12, v12, v13")
    k("v_mov_b32 v13, v12\ns_nop 1\nv_permlane16_swap_b32 v12, v13\ns_nop 1\nv_add_f32 v12, v12, v13")
    k(f"v_mul_f32 v12, {LOG2E:#x}, v12\nv_exp_f32 v12, -v12\nv_add_f32 v12, 1.0, v12\nv_rcp_f32 v12, v12")
    k(f"s_lshl_b32 s{sT0}, s{sJob}, 6\ns_add_u32 s{sT0}, s{sT0}, {WS_G}")
    k("v_lshlrev_b32 v13, 2, v3\nv_mov_b32 v14, 0x7fffffff\nv_cmp_gt_u32 vcc, 16, v2\nv_cndmask_b32 v13, v14, v13, vcc")
    k(f"buffer_store_dword v12, v13, {s(sWS,4)}, s{sT0} offen")
    k(f"s_branch {done}")

def gen_k1(name="k1_kernel", prof=False, stop=None):
    k = Kern(name, nv=256, na=0)
    P = Prof(k, prof, base=64)
    k(f"s_cmp_ge_u32 s2, 256\ns_cbranch_scc1 {name}_end")
    P.stamp()
    decode(k)
    tA, tB = T("A"), T("B")
    k(f"s_and_b32 s4, s{sQ}, 1\ns_cmp_ge_u32 s{sW}, 4\ns_cbranch_scc1 {name}_loaders")
    k(f"s_cmp_eq_u32 s4, 0\ns_cbranch_scc1 {name}_cpA\ns_branch {name}_cpB")
    k.label(f"{name}_loaders")
    k(f"s_cmp_eq_u32 s4, 0\ns_cbranch_scc0 {name}_ldB")
    n0 = P.n
    for t in (tA, tB):
        P.n = n0
        gen_loader(k, t, name, P)
        if stop == "acc":
            k(f"s_branch {name}_end"); continue
        k(f"s_cmp_eq_u32 s{sW}, 4\ns_cbranch_scc0 {name}_side")
        gen_helper(k, t, name)
        k(f"s_branch {name}_fin")
    if stop != "acc":
        k.label(f"{name}_side")
        gen_side(k, name)
    for t in (tA, tB):
        P.n = n0
        gen_compute(k, t, name, P, stop)
    k.label(f"{name}_fin")
    if prof:
        P.n = 7
        k(f"s_load_dwordx2 s[4:5], s[0:1], {A_WS}\ns_waitcnt vmcnt(0) lgkmcnt(0)")
        srd(k, 8, 4, 0x4000000)
        P.stamp()
        P.flush(8, sW, 250, 62)
    k.label(f"{name}_end")
    k("s_endpgm")
    return k

if __name__ == "__main__":
    import sys
    sys.path.insert(0, "exp")
    from build import build
    for tag, kw in (("acc", dict(stop="acc")), ("full", dict()), ("prof", dict(prof=True))):
        k = gen_k1(**kw)
        open(f"k1_{tag}.s", "w").write(module([f"@launch kernel={k.name} grid=(256,1,1) block=(512,1,1) lds={LDS_K1}"], [k]))
        build(f"k1_{tag}.s", f"k1_{tag}.co", k.name, check=(tag == "full"))
        print(tag, "built, pads:", k.npad, "lines:", len(k.lines))
```

```python
from ag import *
from layout import *

def srd(k, r, lo, size):
    k(f"s_mov_b32 s{r}, s{lo}\ns_and_b32 s{r+1}, s{lo+1}, 0xffff\ns_mov_b32 s{r+2}, {size}\ns_mov_b32 s{r+3}, 0x20000")

def dump(k, regs, sOUT, name):
    k("s_lshl_b32 s61, s2, 14\nv_lshlrev_b32 v127, 6, v87")
    k("s_waitcnt vmcnt(0) lgkmcnt(0)\ns_nop 7")
    for i, r in enumerate(regs): k(f"buffer_store_dword v{r}, v127, {s(sOUT,4)}, s61 offen offset:{4*i}")
    k(f"s_waitcnt vmcnt(0)\ns_branch {name}_end")

PROF_OFF = 0x1180000
class Prof:
    def __init__(self, k, on, base=64): self.k, self.on, self.n, self.base = k, on, 0, base
    def stamp(self):
        if not self.on: return
        r = self.base + 2*self.n; self.n += 1
        self.k(f"s_memtime s[{r}:{r+1}]")
    def flush(self, sWS, sW, tmpv, tmps):
        if not self.on: return
        k = self.k
        k("s_waitcnt lgkmcnt(0)")
        k(f"s_lshl_b32 s{tmps}, s2, 3\ns_add_u32 s{tmps}, s{tmps}, s{sW}\ns_lshl_b32 s{tmps}, s{tmps}, 6\ns_add_u32 s{tmps}, s{tmps}, {PROF_OFF}")
        k(f"s_memrealtime s[{self.base + 2*self.n}:{self.base + 2*self.n + 1}]\ns_waitcnt lgkmcnt(0)")
        k(f"v_mov_b32 v{tmpv+1}, 0")
        for i in range(self.n + 1):
            k(f"v_mov_b32 v{tmpv}, s{self.base + 2*i}\nbuffer_store_dword v{tmpv}, v{tmpv+1}, {s(sWS,4)}, s{tmps} offen offset:{4*i}")

def gen_k3(name="k3_kernel", ND=3, rot=True, prof=False, stop=None):
    k = Kern(name, nv=128, na=ND*36)
    sWS, sOUT, sX, sDS, sDBG = 8, 12, 16, 20, 24
    sW, sB, sJ, sH, sRho = 26, 27, 28, 29, 30
    sS, sC = 32, 36
    sO, sF = 44, 48
    sK, sT0, sT1, sT2 = 56, 57, 58, 59
    ACC = 0
    vL16, vK0, vK1, vLane, vN, vG4 = 80, 81, 82, 83, 84, 85
    vG = 88
    vT = 92
    def buf(i, f): return a((i % ND)*36 + f*4, 4)

    P = Prof(k, prof)
    k(f"s_cmp_ge_u32 s2, 256\ns_cbranch_scc1 {name}_end")
    P.stamp()
    k(f"s_load_dwordx2 s[4:5], s[0:1], {A_WS}\ns_load_dwordx2 s[6:7], s[0:1], {A_OUT}")
    k(f"s_load_dwordx2 s[40:41], s[0:1], {A_X}\ns_load_dwordx2 s[42:43], s[0:1], {A_DSKIP}\ns_load_dwordx2 s[{sDBG}:{sDBG+1}], s[0:1], {A_DBG}")
    k(f"v_lshrrev_b32 v{vT}, 6, v0\nv_and_b32 v{vLane}, 63, v0\nv_mov_b32 v87, v0")
    k(f"v_readfirstlane_b32 s{sW}, v{vT}")
    k(f"v_lshlrev_b32 v{vL16}, 4, v{vLane}\nv_and_b32 v{vN}, 15, v{vLane}\nv_lshrrev_b32 v{vG4}, 4, v{vLane}")
    k(f"s_and_b32 s{sRho}, s2, 7\ns_lshr_b32 s{sT0}, s2, 3\ns_lshr_b32 s{sT1}, s{sT0}, 3\ns_and_b32 s{sJ}, s{sT0}, 7")
    k(f"s_lshl_b32 s{sB}, s{sRho}, 2\ns_add_u32 s{sB}, s{sB}, s{sT1}")
    k(f"s_lshl_b32 s{sH}, s{sT1}, 3\ns_add_u32 s{sH}, s{sH}, s{sJ}")
    k("s_waitcnt lgkmcnt(0)")
    srd(k, sWS, 4, WS_SIZE); srd(k, sOUT, 6, 5242880); srd(k, sX, 40, 2621440); srd(k, sDS, 42, 1280)
    k(f"s_mul_i32 s{sT0}, s{sB}, {4*40960}")
    for tj in range(4): k(f"s_add_u32 s{sS+tj}, s{sT0}, {WS_S + tj*40960}")
    k(f"s_mul_i32 s{sT0}, s{sJ}, {5*40960}")
    for nt in range(5): k(f"s_add_u32 s{sC+nt}, s{sT0}, {WS_CF + nt*40960}")
    k(f"s_mul_i32 s{sT0}, s{sB}, {4*20480}")
    for tj in range(4): k(f"s_add_u32 s{sO+tj}, s{sT0}, {WS_O + tj*20480}")
    k(f"s_mul_i32 s{sT0}, s{sJ}, {5*20480}")
    for nt in range(5): k(f"s_add_u32 s{sF+nt}, s{sT0}, {WS_WF + nt*20480}")

    KV = vT
    PQ = 0
    k(f"v_lshlrev_b32 v{vK0}, 3, v0")
    k(f"v_mov_b32 v{vK1}, 0x7fffffff\nv_cmp_gt_u32 vcc, 210, v0\nv_cndmask_b32 v{vK0}, v{vK1}, v{vK0}, vcc")
    k(f"s_lshl_b32 s{sT0}, s{sH}, 15\ns_add_u32 s{sT0}, s{sT0}, {WS_KVP}")
    for c in range(16):
        k(f"s_add_u32 s{sT1 + (c&1)}, s{sT0}, {c*2048}")
        k(f"buffer_load_dwordx2 {v(KV+2*c,2)}, v{vK0}, {s(sWS,4)}, s{sT1 + (c&1)} offen")
    k(f"s_lshl_b32 s{sT0}, s{sH}, 5\ns_lshl_b32 s{sT1}, s{sRho}, 2\ns_add_u32 s{sT0}, s{sT0}, s{sT1}\ns_add_u32 s{sT0}, s{sT0}, s{sW}")
    k(f"s_mul_i32 s{sT0}, s{sT0}, 5120\ns_add_u32 s{sT0}, s{sT0}, {WS_PQ}")
    for m in range(5):
        k(f"buffer_load_dwordx4 {v(PQ+4*m,4)}, v{vL16}, {s(sWS,4)}, s{sT0} offen offset:{m*1024 if m < 4 else 0}" if m < 4 else
          f"s_add_u32 s{sT1}, s{sT0}, 4096\nbuffer_load_dwordx4 {v(PQ+4*m,4)}, v{vL16}, {s(sWS,4)}, s{sT1} offen")
    vGo = 86
    k(f"s_lshl_b32 s{sT0}, s{sRho}, 10\ns_lshl_b32 s{sT1}, s{sW}, 8\ns_add_u32 s{sT0}, s{sT0}, s{sT1}\ns_add_u32 s{sT0}, s{sT0}, {WS_G}")
    k(f"v_lshlrev_b32 v{vK1}, 2, v{vLane}")
    k(f"buffer_load_dword v{vGo}, v{vK1}, {s(sWS,4)}, s{sT0} offen")
    k(f"s_lshl_b32 s{sT0}, s{sB}, 8\ns_add_u32 s{sT0}, s{sT0}, {WS_G}")
    k(f"v_lshlrev_b32 v{vK1}, 2, v{vN}")
    for tj in range(4): k(f"buffer_load_dword v{vG+tj}, v{vK1}, {s(sWS,4)}, s{sT0} offen offset:{tj*64}")
    n_ojob_tail = 5 + 1 + 4

    steps = [("S", i) for i in range(10)] + [("O", i) for i in range(5)]
    if rot:
        k(f"s_lshr_b32 s{sT0}, s2, 3\ns_and_b32 s{sT1}, s{sT0}, 1\ns_lshr_b32 s{sT0}, s{sT0}, 3\ns_xor_b32 s{sT0}, s{sT0}, s{sT1}\ns_and_b32 s{sT0}, s{sT0}, 1\ns_mul_i32 s{sT0}, s{sT0}, 5")
    else:
        k(f"s_mov_b32 s{sT0}, 0")
    k(f"s_lshl_b32 s{sT0}, s{sT0}, 2\ns_add_u32 s{sT0}, s{sT0}, s{sW}\ns_lshl_b32 s{sK}, s{sT0}, 10")
    sKlim = 60
    k(f"s_lshl_b32 s{sKlim}, s{sW}, 10\ns_add_u32 s{sKlim}, s{sKlim}, 40960")
    def issue(i):
        kind, n = steps[i]
        vK = vK0 if i % 2 == 0 else vK1
        if kind == "O" and n == 0:
            k(f"s_lshl_b32 s{sK}, s{sW}, 10")
        k(f"v_add_u32 v{vK}, s{sK}, v{vL16}")
        tb, wb, fl = (sS, sC, "") if kind == "S" else (sO, sF, " sc1")
        for f in range(4): k(f"buffer_load_dwordx4 {buf(i,f)}, v{vK}, {s(sWS,4)}, s{tb+f} offen{fl}")
        for f in range(5): k(f"buffer_load_dwordx4 {buf(i,4+f)}, v{vK}, {s(sWS,4)}, s{wb+f} offen")
        k(f"s_add_u32 s{sK}, s{sK}, 4096")
        if kind == "S":
            k(f"s_sub_u32 s{sT0}, s{sK}, 40960\ns_cmp_ge_u32 s{sK}, s{sKlim}\ns_cselect_b32 s{sK}, s{sT0}, s{sK}")
    for i in range(ND): issue(i)

    P.stamp()
    k(f"s_waitcnt vmcnt({ND*9 + n_ojob_tail})")
    A0, A1 = 124, 125
    for c in range(16):
        lo, hi = KV + 2*c, KV + 2*c + 1
        if c == 0:
            k(f"v_lshlrev_b32 v124, 16, v{lo}\nv_and_b32 v125, 0xffff0000, v{lo}\nv_lshlrev_b32 v126, 16, v{hi}\nv_and_b32 v127, 0xffff0000, v{hi}")
        else:
            k(f"v_lshlrev_b32 v{vK1}, 16, v{lo}\nv_and_b32 v{lo}, 0xffff0000, v{lo}\nv_add_f32 v124, v124, v{vK1}\nv_add_f32 v125, v125, v{lo}")
            k(f"v_lshlrev_b32 v{vK1}, 16, v{hi}\nv_and_b32 v{hi}, 0xffff0000, v{hi}\nv_add_f32 v126, v126, v{vK1}\nv_add_f32 v127, v127, v{hi}")
    k(f"v_cvt_pk_bf16_f32 v{KV}, v124, v125\nv_cvt_pk_bf16_f32 v{KV+1}, v126, v127")
    k(f"v_lshlrev_b32 v{vK1}, 3, v87")
    k(f"ds_write_b64 v{vK1}, {v(KV,2)}")
    k(f"v_mov_b32 v{KV+2}, 0\nv_mov_b32 v{KV+3}, 0\nv_mov_b32 v{KV+4}, 0\nv_mov_b32 v{KV+5}, 0\nv_mov_b32 v{KV+6}, 2048")
    k(f"ds_write_b128 v{KV+6}, {v(KV+2,4)}")
    k("s_waitcnt lgkmcnt(0)\ns_barrier")
    if stop == "kv":
        k(f"v_lshlrev_b32 v{vK1}, 3, v87\nds_read_b64 v[94:95], v{vK1}")
        dump(k, [92, 93, 94, 95, 124, 125, 126, 127 - 1, 0, 1, 4, 16, 86, 88], sOUT, name)
    vA, vAz = KV + 8, KV + 9
    k(f"v_lshrrev_b32 v{vK1}, 2, v{vN}\nv_and_b32 v{vA}, 3, v{vN}\nv_mul_u32_u24 v{vA}, 80, v{vA}")
    k(f"v_cmp_eq_u32 vcc, v{vK1}, v{vG4}")
    AOP = KV + 12
    NUM = 20
    k(f"v_mov_b32 v{vAz}, 2048")
    k.c("per read: addr = diag ? vA + off : 2048  (computed into a rotating temp)")
    order = [(i, m) for i in range(6) for m in range(5)]
    TA = KV + 10
    def rd(n):
        i, m = order[n]
        off = (320*i + 16*m) if i < 5 else (1600 + 16*m)
        t = TA + (n & 1)
        if i < 5: k(f"v_add_u32 v{t}, {off}, v{vA}")
        else: k(f"v_mov_b32 v{t}, {off}")
        k(f"v_cndmask_b32 v{t}, v{vAz}, v{t}, vcc")
        k(f"ds_read_b128 {v(AOP + 4*(n % 4), 4)}, v{t}")
    for n in range(3): rd(n)
    k(f"s_waitcnt vmcnt({ND*9 + 5})")
    for n in range(30):
        if n + 3 < 30: rd(n + 3)
        k(f"s_waitcnt lgkmcnt({min(3, 29 - n)})")
        i, m = order[n]
        src = "0" if m == 0 else v(NUM + 4*i, 4)
        k(f"v_mfma_f32_16x16x32_bf16 {v(NUM+4*i,4)}, {v(AOP + 4*(n % 4), 4)}, {v(PQ+4*m,4)}, {src}")
    if stop == "num":
        k("s_nop 7\ns_nop 7")
        dump(k, [20, 21, 22, 23, 24, 25, 36, 37, 38, 39, 40, 41, 42, 43, 0, 16], sOUT, name)
    P.stamp()
    k(f"s_waitcnt vmcnt({ND*9 + 4})")
    DEN = NUM + 20
    k(f"v_add_f32 v{DEN}, 0x358637bd, v{DEN}")
    k(f"v_rcp_f32 v{DEN}, v{DEN}")
    k(f"v_sub_f32 v{vGo}, 1.0, v{vGo}")
    k(f"v_mul_f32 v{DEN}, v{DEN}, v{vGo}")
    for d in range(20): k(f"v_mul_f32 v{NUM+d}, v{NUM+d}, v{DEN}")
    OP = 48
    for d in range(10): k(f"v_cvt_pk_bf16_f32 v{OP+d}, v{NUM+2*d}, v{NUM+2*d+1}")
    k(f"s_lshl_b32 s{sT0}, s{sRho}, 2\ns_add_u32 s{sT0}, s{sT0}, s{sW}\ns_mul_i32 s{sT0}, s{sT0}, {4*20480}")
    k(f"s_and_b32 s{sT1}, s{sH}, 3\ns_lshl_b32 s{sT1}, s{sT1}, 8\ns_add_u32 s{sT0}, s{sT0}, s{sT1}\ns_add_u32 s{sT0}, s{sT0}, {WS_O}")
    k(f"v_mul_u32_u24 v{vK1}, 20480, v{vG4}\nv_lshl_add_u32 v{vK1}, v{vN}, 4, v{vK1}")
    k(f"s_lshr_b32 s{sT1}, s{sH}, 2\ns_lshl_b32 s{sT2}, s{sT1}, 11\ns_add_u32 s{sT2}, s{sT2}, s{sT0}")
    k(f"buffer_store_dwordx4 {v(OP,4)}, v{vK1}, {s(sWS,4)}, s{sT2} offen sc1")
    k(f"buffer_store_dwordx4 {v(OP+4,4)}, v{vK1}, {s(sWS,4)}, s{sT2} offen offset:1024 sc1")
    k(f"s_and_b32 s{sT2}, s{sT1}, 1\ns_lshl_b32 s{sT2}, s{sT2}, 3\ns_lshr_b32 s{sT1}, s{sT1}, 1\ns_add_u32 s{sT1}, s{sT1}, 16\ns_lshl_b32 s{sT1}, s{sT1}, 10")
    k(f"s_add_u32 s{sT2}, s{sT2}, s{sT1}\ns_add_u32 s{sT2}, s{sT2}, s{sT0}")
    k(f"buffer_store_dwordx2 {v(OP+8,2)}, v{vK1}, {s(sWS,4)}, s{sT2} offen sc1")
    k("s_waitcnt vmcnt(0)\ns_barrier")
    lab = k.newlabel("sig")
    k(f"s_cmp_lg_u32 s{sW}, 0\ns_cbranch_scc1 {lab}")
    k(f"s_lshl_b32 s{sT0}, s{sRho}, 2\nv_mov_b32 v{vK1}, s{sT0}\nv_mov_b32 v{vT}, 1")
    k(f"s_mov_b64 s[62:63], exec\ns_mov_b64 exec, 1")
    k(f"global_atomic_add v{vK1}, v{vT}, {s(sDBG,2)} sc1")
    k("s_mov_b64 exec, s[62:63]")
    k.label(lab)
    P.stamp()
    for r in range(80): k(f"v_mov_b32 v{ACC+r}, 0")
    outstanding_after = lambda i: min(len(steps) - 1 - i, ND - 1) * 9
    for i in range(len(steps)):
        kind, n = steps[i]
        if kind == "O" and n == 0:
            P.stamp()
            for tj in range(4):
                for nt in range(5):
                    for r in range(4): k(f"v_mul_f32 v{ACC+(tj*5+nt)*4+r}, v{vG+tj}, v{ACC+(tj*5+nt)*4+r}")
        if i >= ND or True:
            k(f"s_waitcnt vmcnt({outstanding_after(i)})")
        for tj in range(4):
            for nt in range(5):
                d = v(ACC + (tj*5+nt)*4, 4)
                k(f"v_mfma_f32_16x16x32_bf16 {d}, {buf(i,4+nt)}, {buf(i,tj)}, {d}")
        j = i + ND
        if j < len(steps):
            if steps[j][0] == "O" and steps[j][1] == 0:
                l1, l2 = k.newlabel("poll"), k.newlabel("polled")
                k(f"s_cmp_lg_u32 s{sW}, 0\ns_cbranch_scc1 {l2}")
                k(f"s_lshl_b32 s{sT0}, s{sRho}, 2\nv_mov_b32 v{vT}, s{sT0}")
                k.label(l1)
                k(f"global_load_dword v{vT+1}, v{vT}, {s(sDBG,2)} sc1\ns_waitcnt vmcnt(0)\nv_readfirstlane_b32 s{sT1}, v{vT+1}")
                k(f"s_cmp_ge_u32 s{sT1}, 32\ns_cbranch_scc1 {l2}\ns_sleep 2\ns_branch {l1}")
                k.label(l2)
                k("s_barrier")
            issue(j)
    P.stamp()
    XV, DV = vT, vT + 10
    k(f"s_lshl_b32 s{sT0}, s{sB}, 6\ns_lshl_b32 s{sT1}, s{sW}, 4\ns_add_u32 s{sT0}, s{sT0}, s{sT1}\ns_mul_i32 s{sT0}, s{sT0}, 1280\ns_mul_i32 s{sT1}, s{sJ}, 160\ns_add_u32 s{sT0}, s{sT0}, s{sT1}")
    k(f"v_mul_u32_u24 v{vK0}, 1280, v{vN}\nv_lshl_add_u32 v{vK0}, v{vG4}, 3, v{vK0}\nv_lshlrev_b32 v{vK1}, 3, v{vG4}")
    for nt in range(5): k(f"buffer_load_dwordx2 {v(XV+2*nt,2)}, v{vK0}, {s(sX,4)}, s{sT0} offen offset:{nt*32}")
    for nt in range(5): k(f"buffer_load_dwordx2 {v(DV+2*nt,2)}, v{vK1}, {s(sDS,4)}, s{sT1} offen offset:{nt*32}")
    vR = vT + 20
    k(f"s_mul_i32 s{sT2}, s{sW}, 20480\nv_add_u32 v{vR}, s{sT2}, v{vL16}")
    k("s_barrier")
    for t in range(20): k(f"ds_write_b128 v{vR}, {v(ACC+4*t,4)} offset:{t*1024}")
    k("s_waitcnt lgkmcnt(0)\ns_barrier")
    k(f"s_mul_i32 s{sT2}, s{sW}, 5120\nv_add_u32 v{vR}, s{sT2}, v{vL16}\nv_add_u32 v{vR+1}, 40960, v{vR}")
    for u in range(4):
        for nt in range(5):
            k(f"ds_read_b128 {v(ACC+(u*5+nt)*4,4)}, v{vR + (u >> 1)} offset:{(u & 1)*20480 + nt*1024}")
    k(f"s_cmp_eq_u32 s{sW}, 1\ns_cselect_b32 s{sT2}, 1, 0")
    vGw = vR + 2
    k(f"v_mov_b32 v{vGw}, v{vG}")
    for tj in range(1, 4):
        k(f"s_cmp_eq_u32 s{sW}, {tj}\ns_cselect_b64 vcc, -1, 0\nv_cndmask_b32 v{vGw}, v{vGw}, v{vG+tj}, vcc")
    k("s_waitcnt vmcnt(0) lgkmcnt(0)")
    vO = vR + 3
    k(f"s_lshl_b32 s{sT0}, s{sB}, 6\ns_lshl_b32 s{sT1}, s{sW}, 4\ns_add_u32 s{sT0}, s{sT0}, s{sT1}\ns_mul_i32 s{sT0}, s{sT0}, 2560\ns_mul_i32 s{sT1}, s{sJ}, 320\ns_add_u32 s{sT0}, s{sT0}, s{sT1}")
    k(f"v_mul_u32_u24 v{vO}, 2560, v{vN}\nv_lshl_add_u32 v{vO}, v{vG4}, 4, v{vO}")
    T = vR + 4
    for nt in range(5):
        for r in range(4):
            d = ACC + nt*4 + r
            k(f"v_add_f32 v{d}, v{d}, v{d+20}\nv_add_f32 v{d+40}, v{d+40}, v{d+60}")
        for r in range(4):
            xr, dr = XV + 2*nt + (r >> 1), DV + 2*nt + (r >> 1)
            if r & 1: k(f"v_and_b32 v{T}, 0xffff0000, v{xr}\nv_and_b32 v{T+1}, 0xffff0000, v{dr}")
            else: k(f"v_lshlrev_b32 v{T}, 16, v{xr}\nv_lshlrev_b32 v{T+1}, 16, v{dr}")
            d = ACC + nt*4 + r
            k(f"v_mul_f32 v{T}, v{T}, v{T+1}\nv_add_f32 v{d}, v{d}, v{d+40}\nv_fmac_f32 v{d}, v{vGw}, v{T}")
        k(f"buffer_store_dwordx4 {v(ACC+nt*4,4)}, v{vO}, {s(sOUT,4)}, s{sT0} offen offset:{nt*64}")
    P.stamp()
    k("s_waitcnt vmcnt(0)") if prof else None
    P.stamp()
    P.flush(sWS, sW, vT, sT0)
    k.label(f"{name}_end")
    k("s_endpgm")
    return k

if __name__ == "__main__":
    import sys
    sys.path.insert(0, "exp")
    from build import build
    for tag, kw in (("p3", dict(ND=3)), ("p4", dict(ND=4)), ("p2", dict(ND=2)), ("p3nr", dict(ND=3, rot=False))):
        k = gen_k3(prof=True, **kw)
        open(f"k3_{tag}.s", "w").write(module([f"@launch kernel={k.name} grid=(256,1,1) block=(256,1,1) lds=81920"], [k]))
        build(f"k3_{tag}.s", f"k3_{tag}.co", k.name, check=False)
    k = gen_k3()
    open("k3.s", "w").write(module([f"@launch kernel={k.name} grid=(256,1,1) block=(256,1,1) lds=81920"], [k]))
    build("k3.s", "k3.co", k.name)
    print("built, pads:", k.npad, "lines:", len(k.lines))
```

```python
WS_S   = 0x000000
WS_PQ  = 0x500000
WS_CF  = 0xA00000
WS_WF  = 0xC00000
WS_O   = 0xD00000
WS_KVP = 0x1000000
WS_G   = 0x1100000
WS_NONCE = 0x1108000
WS_OF  = 0x1109000
WS_E   = 0x1110000
WS_SIZE = 0x1200000
A_X, A_LRE, A_LIM, A_BRE, A_BIM, A_CRE, A_CIM, A_LOGDT, A_DSKIP, A_BX, A_WQKV, A_WPHI, A_WO, A_GATE, A_OUT, A_DBG, A_WS = [8*i for i in range(17)]
```

```python
import sys
sys.path.insert(0, "gen"); sys.path.insert(0, "exp")
from ag import *
import k1, k3
from build import build
NAME = "gated_mix__ssm_conv_s5__linear_kernel_hedgehog__prompt"
def make(path, k1kw={}, k3kw={}):
    a = k1.gen_k1(name="hh_in_kernel", **k1kw); b = k3.gen_k3(name="hh_out_kernel", **k3kw)
    ref = open(f"cdna_kernels/{NAME}.s.ref").read().split("\n")
    hdr = []
    for l in ref:
        if l.startswith("; Override launch"): break
        hdr.append(l[2:] if l.startswith("; ") else l[1:])
    hdr += [f"@launch kernel={a.name} grid=(256,1,1) block=(512,1,1) lds={k1.LDS_K1}",
            f"@launch kernel={b.name} grid=(256,1,1) block=(256,1,1) lds={getattr(b, 'lds', 81920)}"]
    txt = module(hdr, [a, b])
    open(path, "w").write(txt)
    build(path, path.replace(".s", ".co"), a.name)
    print(path, len(txt), "bytes; pads", a.npad, b.npad)
if __name__ == "__main__":
    make(f"cdna_kernels/{NAME}.s")
```

```python
from ag import *
from layout import *
from k3 import srd, Prof

STAGE = 44032
XOFF = 0
L_WPHI, L_ZERO, L_ETAB, L_CTAB, L_CNT, L_COEF = 132096, 135296, 136064, 144256, 152448, 152576
LDS_K1 = 163840
LOG2E = 0x3fb8aa3b
INV2PI = 0x3e22f983

class T:
    def __init__(self, typ):
        self.typ = typ
        if typ == "A":
            self.nT, self.nP, self.p0 = 10, 1, 0
            self.secs = [(1, 16384), (2, 27648)]
            self.wsoff = 38912
        else:
            self.nT, self.nP, self.p0 = 5, 4, 1
            self.secs = [(0, 16384)]
            self.wsoff = 27648
        self.nS = 2*self.nP
        self.ntile = self.nT + self.nS

sW, sC, sHG, sQ = 3, 26, 27, 28
def decode(k, rot="T2"):
    k(f"s_load_dwordx2 s[24:25], s[0:1], {A_X}\ns_load_dwordx4 s[20:23], s[0:1], {A_BRE}\ns_load_dwordx2 s[18:19], s[0:1], {A_WQKV}")
    k("v_lshrrev_b32 v1, 6, v0\ns_nop 0\nv_readfirstlane_b32 s3, v1")
    k("s_and_b32 s4, s2, 7\ns_lshr_b32 s5, s2, 3")
    k(f"s_and_b32 s6, s4, 1\ns_lshl_b32 s6, s6, 3\ns_and_b32 s7, s5, 7\ns_add_u32 s{sC}, s6, s7")
    k(f"s_lshr_b32 s6, s4, 1\ns_lshl_b32 s6, s6, 2\ns_lshr_b32 s29, s5, 3\ns_add_u32 s{sQ}, s6, s29")
    k(f"s_lshr_b32 s{sHG}, s{sQ}, 1")
    if rot == "T2": k("s_xor_b32 s30, s7, s29\ns_and_b32 s30, s30, 1\ns_mul_i32 s30, s30, 5")
    elif rot == "T4": k("s_add_u32 s30, s7, s29\ns_and_b32 s30, s30, 3\ns_mul_i32 s30, s30, 5\ns_lshr_b32 s30, s30, 1")
    elif rot == "A":
        k("s_mul_i32 s30, s7, 5\ns_mul_i32 s6, s29, 10\ns_add_u32 s30, s30, s6\ns_lshr_b32 s30, s30, 2")
        for _ in range(2): k("s_sub_u32 s6, s30, 10\ns_cmp_ge_u32 s30, 10\ns_cselect_b32 s30, s6, s30")
    else: k("s_mov_b32 s30, 0")
sROT = 30

def lam_calc(k, lre, lim, ldt, lr, li, t0, t1):
    k(f"v_mul_f32 v{t0}, {LOG2E:#x}, v{ldt}\nv_exp_f32 v{t0}, v{t0}")
    k(f"v_cvt_pk_bf16_f32 v{t0}, v{t0}, v{t0}\nv_lshlrev_b32 v{t0}, 16, v{t0}")
    k(f"v_mul_f32 v{t1}, v{t0}, v{lim}\nv_mul_f32 v{t0}, v{t0}, v{lre}")
    k(f"v_mul_f32 v{t0}, {LOG2E:#x}, v{t0}\nv_exp_f32 v{t0}, v{t0}")
    k(f"v_mul_f32 v{t1}, {INV2PI:#x}, v{t1}\nv_rndne_f32 v{lr}, v{t1}\nv_sub_f32 v{t1}, v{t1}, v{lr}")
    k(f"v_cos_f32 v{lr}, v{t1}\nv_sin_f32 v{li}, v{t1}")
    k(f"v_mul_f32 v{lr}, v{lr}, v{t0}\nv_mul_f32 v{li}, v{li}, v{t0}")

def csquare(k, r, i, t):
    k(f"v_mul_f32 v{t}, v{i}, v{i}\nv_mul_f32 v{i}, v{r}, v{i}\nv_fma_f32 v{r}, v{r}, v{r}, -v{t}\nv_add_f32 v{i}, v{i}, v{i}")

def load_lam_inputs(k, voff, d0, d1, d2, sA, sB, sC_):
    k(f"buffer_load_ushort v{d0}, v{voff}, {s(sA,4)}, 0 offen\nbuffer_load_ushort v{d1}, v{voff}, {s(sB,4)}, 0 offen\nbuffer_load_ushort v{d2}, v{voff}, {s(sC_,4)}, 0 offen")

def lds_wait(k, addr_v, tmp_v, target, tmps):
    l = k.newlabel("spin"); d = k.newlabel("spun")
    k.label(l)
    k(f"ds_read_b32 v{tmp_v}, v{addr_v}\ns_waitcnt lgkmcnt(0)\nv_readfirstlane_b32 s{tmps}, v{tmp_v}")
    k(f"s_cmp_ge_u32 s{tmps}, {target}\ns_cbranch_scc1 {d}\ns_sleep 1\ns_branch {l}")
    k.label(d)

def lds_signal(k, addr_v, one_v):
    k("s_mov_b64 s[60:61], exec\ns_mov_b64 exec, 1")
    k(f"ds_add_u32 v{addr_v}, v{one_v}")
    k("s_mov_b64 exec, s[60:61]")

def gen_loader(k, t, name, P):
    L = f"{name}_ld{t.typ}"
    sX, sWQ, sBS = 8, 12, 36
    sG, sL = 40, 84
    sKx, sKq, sSt, sIt, sT0, sT1, sV = 56, 57, 58, 59, 62, 63, 31
    vLane, vXo, vSo, vQo = 2, 3, 4, 6
    k.label(L)
    k(f"s_sub_u32 s{sV}, s{sW}, 4")
    k(f"v_and_b32 v{vLane}, 63, v0")
    k(f"v_lshrrev_b32 v12, 3, v{vLane}\nv_and_b32 v13, 3, v12")
    k(f"v_and_b32 v14, 1, v13\nv_lshlrev_b32 v14, 2, v14\nv_lshrrev_b32 v15, 1, v13\nv_add_u32 v14, v14, v15")
    k(f"v_lshrrev_b32 v15, 5, v{vLane}\nv_lshl_add_u32 v14, v15, 3, v14")
    k(f"s_and_b32 s{sT0}, s{sV}, 1\ns_lshl_b32 s{sT1}, s{sT0}, 4\ns_and_b32 s4, s{sV}, 2\ns_add_u32 s{sT1}, s{sT1}, s4")
    k(f"v_add_u32 v14, s{sT1}, v14\nv_mul_u32_u24 v14, 1280, v14")
    k(f"s_lshl_b32 s{sT1}, s{sT0}, 2\nv_lshrrev_b32 v15, 4, v{vLane}\nv_add_u32 v15, s{sT1}, v15")
    k(f"v_and_b32 v16, 7, v{vLane}\nv_xor_b32 v15, v15, v16\nv_lshlrev_b32 v15, 4, v15")
    k(f"v_add_u32 v{vXo}, v14, v15")
    k(f"s_mul_i32 s4, s{sC}, 163840\ns_lshl_b32 s5, s{sV}, 10")
    for n in range(4): k(f"s_add_u32 s{sG+n}, s4, {n*40960}\ns_add_u32 s{sL+n}, s5, {n*4096}")
    k(f"s_lshl_b32 s{sKx}, s{sROT}, 7\ns_mul_i32 s{sKq}, s{sROT}, 245760\ns_mov_b32 s{sSt}, 0")
    k("s_waitcnt lgkmcnt(0)")
    srd(k, sX, 24, 2621440)
    def dma(gi, rs, vo, sk):
        k(f"s_add_u32 s{sT0}, s{sG+gi}, s{sk}\ns_add_u32 m0, s{sL+gi}, s{sSt}")
        k(f"buffer_load_dwordx4 v{vo}, {s(rs,4)}, s{sT0} offen lds")
    for n in range(4): dma(n, sX, vXo, sKx)
    k(f"s_and_b32 s{sT0}, s{sV}, 1\ns_lshl_b32 s{sT1}, s{sT0}, 3\nv_add_u32 v14, s{sT1}, v12\nv_mul_u32_u24 v14, 1280, v14\nv_add_u32 v{vSo}, v14, v15")
    k(f"s_cmp_ge_u32 s{sV}, 2\ns_cselect_b32 s{sBS}, s22, s20\ns_cselect_b32 s{sBS+1}, s23, s21\ns_and_b32 s{sBS+1}, s{sBS+1}, 0xffff")
    k(f"s_mov_b32 s{sBS+2}, 819200\ns_mov_b32 s{sBS+3}, 0x20000")
    k(f"s_mul_i32 s4, s{sHG}, {80*1280}")
    for n in range(t.nP): k(f"s_add_u32 s{sG+4+n}, s4, {16*(t.p0+n)*1280}\ns_add_u32 s{sL+4+n}, s5, {t.wsoff + n*4096}")
    for n in range(t.nP): dma(4+n, sBS, vSo, sKx)
    srd(k, sWQ, 18, 2457600)
    nq = 3 if t.typ == "B" else 6
    base = 4 + t.nP
    def skip_last(j, body):
        if j == nq - 1:
            l = k.newlabel("skipdma")
            k(f"s_cmp_ge_u32 s{sV}, {3 if t.typ == 'B' else 2}\ns_cbranch_scc1 {l}")
            body(); k.label(l)
        else: body()
    for j in range(nq):
        gi = base + j
        k(f"s_add_u32 s{sT0}, s{sV}, {4*j}")
        if t.typ == "A":
            k(f"s_sub_u32 s{sT1}, s{sT0}, 11\ns_cmp_ge_u32 s{sT0}, 11\ns_cselect_b32 s{sT0}, s{sT1}, s{sT0}")
            k(f"s_cselect_b32 s4, 1, 0\ns_mul_i32 s{sG+gi}, s4, 1280\ns_add_u32 s{sG+gi}, s{sG+gi}, 1280\ns_mul_i32 s{sL+gi}, s4, 11264\ns_add_u32 s{sL+gi}, s{sL+gi}, 16384")
        else:
            k(f"s_mov_b32 s{sG+gi}, 0\ns_mov_b32 s{sL+gi}, 16384")
        k(f"s_lshl_b32 s{sT1}, s{sT0}, 10\ns_add_u32 s{sL+gi}, s{sL+gi}, s{sT1}")
        k(f"s_mul_i32 s{sT1}, s{sHG}, 160\ns_add_u32 s{sG+gi}, s{sG+gi}, s{sT1}")
        k(f"s_lshl_b32 s{sT0}, s{sT0}, 6\nv_add_u32 v12, s{sT0}, v{vLane}")
        k(f"v_mul_u32_u24 v13, 745, v12\nv_lshrrev_b32 v13, 16, v13")
        k(f"v_mul_u32_u24 v14, 88, v13\nv_sub_u32 v14, v12, v14")
        k(f"v_mul_u32_u24 v15, 205, v14\nv_lshrrev_b32 v15, 11, v15")
        k(f"v_mul_u32_u24 v16, 10, v15\nv_sub_u32 v16, v14, v16")
        k(f"v_lshl_add_u32 v15, v13, 3, v15\nv_mul_u32_u24 v15, 3840, v15\nv_lshl_add_u32 v15, v16, 4, v15")
        k(f"v_cmp_gt_u32 vcc, 80, v14\nv_mov_b32 v16, 0x7fffffff\nv_cndmask_b32 v{vQo+j}, v16, v15, vcc")
        skip_last(j, lambda: dma(gi, sWQ, vQo + j, sKq))
    def advance():
        k(f"s_add_u32 s{sKx}, s{sKx}, 128\ns_add_u32 s{sKq}, s{sKq}, 245760\ns_cmp_ge_u32 s{sKx}, 1280")
        k(f"s_cselect_b32 s{sKx}, 0, s{sKx}\ns_cselect_b32 s{sKq}, 0, s{sKq}")
        k(f"s_add_u32 s{sSt}, s{sSt}, {STAGE}\ns_cmp_ge_u32 s{sSt}, {3*STAGE}\ns_cselect_b32 s{sSt}, 0, s{sSt}")
    advance()
    def issue():
        for n in range(4): dma(n, sX, vXo, sKx)
        for n in range(t.nP): dma(4+n, sBS, vSo, sKx)
        for j in range(nq): skip_last(j, lambda: dma(base + j, sWQ, vQo + j, sKq))
        advance()
    lp, lb0 = k.newlabel("ldloop"), k.newlabel("ldb0")
    k(f"s_mov_b32 s{sIt}, -2")
    k.label(lp)
    k(f"s_cmp_eq_u32 s{sIt}, -2\ns_cbranch_scc1 {lb0}")
    k("s_waitcnt vmcnt(10)\ns_barrier")
    k.label(lb0)
    issue()
    k(f"s_add_u32 s{sIt}, s{sIt}, 1\ns_cmp_lg_u32 s{sIt}, 7\ns_cbranch_scc1 {lp}")
    P.stamp()

def loader_tail(k, n_extra):
    k(f"s_waitcnt vmcnt({10 + n_extra})\ns_barrier\ns_waitcnt vmcnt({n_extra})\ns_barrier\ns_barrier")

class CR:
    def __init__(self, t):
        self.ACC = 0
        self.WF = 104
        self.XF = 156
        self.aX0, self.aX1, self.aW0, self.aW1, self.aT = 172, 173, 174, 175, 176
        self.LAM = 178
        self.vLane, self.vN, self.vG, self.vTid = 194, 195, 196, 197
        self.EA = 198
        self.TMP = 206
        self.t = t
    def accT(self, tt, i): return self.ACC + (tt*2 + i)*4
    def accS(self, u, i): return self.ACC + ((self.t.nT + u)*2 + i)*4

def gen_mainloop(k, t, R):
    sSt, sIt, sD, sN = 58, 59, 62, 63
    def reads(tile, st):
        w = R.WF + 4*tile
        if tile < t.nT:
            off = t.secs[tile // 5][1] + 5632*st + 8*(tile % 5)
            return [f"ds_read_b64_tr_b16 {v(w,2)}, v{R.aT} offset:{off}", f"ds_read_b64_tr_b16 {v(w+2,2)}, v{R.aT} offset:{off+640}"]
        u = tile - t.nT
        return [f"ds_read_b128 {v(w,4)}, v{R.aW0 if st == 0 else R.aW1} offset:{t.wsoff + 2048*u}"]
    def xreads(st):
        return [f"ds_read_b128 {v(R.XF + 8*st + 4*i, 4)}, v{R.aX0 if st == 0 else R.aX1} offset:{2048*i}" for i in range(2)]
    def mfmas(tile, st):
        out = []
        for i in range(2):
            x = v(R.XF + 8*st + 4*i, 4); w = v(R.WF + 4*tile, 4)
            if tile < t.nT:
                d = v(R.accT(tile, i), 4); out.append(f"v_mfma_f32_16x16x32_bf16 {d}, {w}, {x}, {d}")
            else:
                d = v(R.accS(tile - t.nT, i), 4); out.append(f"v_mfma_f32_16x16x32_bf16 {d}, {x}, {w}, {d}")
        return out
    NB = 3
    seq = []
    seq += [("rd", r, ("x", 1)) for r in xreads(1)]
    for tile in range(t.ntile):
        seq.append(("mm", tile, 0))
        seq += [("rd", r, ("w", tile, 1)) for r in reads(tile, 1)]
    for tile in range(NB): seq.append(("mm", tile, 1))
    seq.append(("bar",))
    seq += [("rd", r, ("x", 0)) for r in xreads(0)]
    for tile in range(NB): seq += [("rd", r, ("w", tile, 0)) for r in reads(tile, 0)]
    for tile in range(NB, t.ntile):
        seq.append(("mm", tile, 1))
        seq += [("rd", r, ("w", tile, 0)) for r in reads(tile, 0)]
    init = [r for r in xreads(0)]
    for tile in range(t.ntile): init += reads(tile, 0)
    for r in init: k(r)
    def counts():
        q = [("x", 0)]*2
        for tile in range(t.ntile): q += [("w", tile, 0)]*len(reads(tile, 0))
        res = []
        for it in range(2):
            res = []
            for e in seq:
                if e[0] == "rd": q.append(e[2])
                elif e[0] == "bar": q = []
                else:
                    need_tags = {("w", e[1], e[2]), ("x", e[2])}
                    last = max([i for i, tg in enumerate(q) if tg in need_tags], default=-1)
                    res.append(len(q) - 1 - last if last >= 0 else None)
                    if last >= 0: q = q[last+1:]
        return res
    cnt = counts()
    lp = k.newlabel("main")
    k(f"s_mov_b32 s{sIt}, 0\ns_mov_b32 s{sSt}, 0")
    k.label(lp)
    ci = 0
    for e in seq:
        if e[0] == "rd": k(e[1])
        elif e[0] == "bar":
            k("s_waitcnt lgkmcnt(0)\ns_barrier")
            k(f"s_add_u32 s{sN}, s{sSt}, {STAGE}\ns_cmp_ge_u32 s{sN}, {3*STAGE}\ns_cselect_b32 s{sN}, 0, s{sN}\ns_sub_u32 s{sD}, s{sN}, s{sSt}\ns_mov_b32 s{sSt}, s{sN}")
            for r in (R.aX0, R.aX1, R.aW0, R.aW1, R.aT): k(f"v_add_u32 v{r}, s{sD}, v{r}")
        else:
            c = cnt[ci]; ci += 1
            if c is not None: k(f"s_waitcnt lgkmcnt({min(c, 15)})")
            for m in mfmas(e[1], e[2]): k(m)
    k(f"s_add_u32 s{sIt}, s{sIt}, 1\ns_cmp_lt_u32 s{sIt}, 10\ns_cbranch_scc1 {lp}")
    k("s_waitcnt lgkmcnt(0)")

def gen_compute_prologue(k, t, R, sWS):
    sLR, sLI, sLD, sWP = 8, 12, 16, 20
    k(f"s_load_dwordx2 s[4:5], s[0:1], {A_LRE}\ns_load_dwordx2 s[6:7], s[0:1], {A_LIM}")
    k(f"s_load_dwordx2 s[32:33], s[0:1], {A_LOGDT}\ns_load_dwordx2 s[34:35], s[0:1], {A_WPHI}\ns_load_dwordx2 s[36:37], s[0:1], {A_WS}")
    k(f"v_mov_b32 v{R.vTid}, v0\nv_and_b32 v{R.vLane}, 63, v0\nv_and_b32 v{R.vN}, 15, v0\nv_bfe_u32 v{R.vG}, v0, 4, 2")
    k("s_waitcnt lgkmcnt(0)")
    srd(k, sLR, 4, 1280); srd(k, sLI, 6, 1280); srd(k, sLD, 32, 1280); srd(k, sWP, 34, 25600); srd(k, sWS, 36, WS_SIZE)
    T0 = R.TMP
    k(f"v_lshlrev_b32 v{T0}, 4, v{R.vTid}\ns_mul_i32 s4, s{sHG}, 3200")
    k(f"v_cmp_gt_u32 vcc, 200, v{R.vTid}\nv_mov_b32 v{T0+1}, 0x7fffffff\nv_cndmask_b32 v{T0+1}, v{T0+1}, v{T0}, vcc")
    k(f"buffer_load_dwordx4 {v(T0+4,4)}, v{T0+1}, {s(sWP,4)}, s4 offen")
    for p in range(t.nP):
        k(f"s_mul_i32 s4, s{sHG}, 160\ns_add_u32 s4, s4, {32*(t.p0+p)}\nv_lshl_add_u32 v{T0+2}, v{R.vN}, 1, s4")
        load_lam_inputs(k, T0+2, T0+8+3*p, T0+9+3*p, T0+10+3*p, sLR, sLI, sLD)
    for r in range(8*t.ntile): k(f"v_mov_b32 v{R.ACC+r}, 0")
    k(f"v_lshrrev_b32 v{T0+2}, 1, v{R.vN}\nv_xor_b32 v{T0+2}, v{T0+2}, v{R.vG}")
    k(f"v_lshlrev_b32 v{T0+3}, 7, v{R.vN}")
    k(f"v_lshl_add_u32 v{R.aW0}, v{T0+2}, 4, v{T0+3}\nv_xor_b32 v{T0+2}, 4, v{T0+2}\nv_lshl_add_u32 v{R.aW1}, v{T0+2}, 4, v{T0+3}")
    k(f"s_lshl_b32 s4, s{sW}, 12\nv_add_u32 v{R.aX0}, s4, v{R.aW0}\nv_add_u32 v{R.aX1}, s4, v{R.aW1}")
    k(f"v_lshrrev_b32 v{T0+2}, 2, v{R.vN}\nv_lshl_add_u32 v{T0+2}, v{R.vG}, 3, v{T0+2}\nv_mul_u32_u24 v{T0+2}, 160, v{T0+2}")
    k(f"v_lshl_add_u32 v{T0+2}, v{R.vG}, 7, v{T0+2}\nv_and_b32 v{T0+3}, 3, v{R.vN}\nv_mul_u32_u24 v{T0+3}, 40, v{T0+3}\nv_add_u32 v{R.aT}, v{T0+2}, v{T0+3}")
    k(f"v_mov_b32 v{T0+24}, 0\nv_mov_b32 v{T0+25}, 0\nv_mov_b32 v{T0+26}, 0\nv_mov_b32 v{T0+27}, 0")
    k(f"v_lshlrev_b32 v{T0+2}, 4, v{R.vTid}\nv_add_u32 v{T0+2}, {L_ZERO}, v{T0+2}")
    k(f"v_cmp_gt_u32 vcc, 48, v{R.vTid}\nv_mov_b32 v{T0+3}, {L_CNT}\nv_cndmask_b32 v{T0+2}, v{T0+3}, v{T0+2}, vcc")
    k(f"ds_write_b128 v{T0+2}, {v(T0+24,4)}")
    k("s_waitcnt vmcnt(0)")
    k(f"v_add_u32 v{T0}, {L_WPHI}, v{T0}\nv_mov_b32 v{T0+1}, {L_CNT + 64}")
    k(f"v_cmp_gt_u32 vcc, 200, v{R.vTid}\nv_cndmask_b32 v{T0}, v{T0+1}, v{T0}, vcc")
    k(f"ds_write_b128 v{T0}, {v(T0+4,4)}")
    for p in range(t.nP):
        a0, a1, a2 = T0+8+3*p, T0+9+3*p, T0+10+3*p
        for x in (a0, a1, a2): k(f"v_lshlrev_b32 v{x}, 16, v{x}")
        lr, li = R.LAM + 4*p, R.LAM + 4*p + 1
        lam_calc(k, a0, a1, a2, lr, li, T0+2, T0+3)
        k(f"v_mov_b32 v{lr+2}, v{lr}\nv_mov_b32 v{lr+3}, v{li}")
        csquare(k, lr+2, lr+3, T0+2); csquare(k, lr+2, lr+3, T0+2)
    k("s_waitcnt lgkmcnt(0)")

def u_pair(R, p, step, im):
    return R.accS(2*p + im, step >> 1) + 2*(step & 1)

def gen_stageA(k, t, R):
    T0 = R.TMP
    k(f"s_lshl_b32 s4, s{sW}, 2\nv_add_u32 v{T0}, s4, v{R.vG}\nv_lshlrev_b32 v{T0}, 9, v{T0}\nv_lshl_add_u32 v{T0}, v{R.vN}, 3, v{T0}\nv_add_u32 v{T0}, {L_ETAB}, v{T0}")
    for p in range(t.nP):
        lam = R.LAM + 4*p
        H = T0 + 2
        HR, HI = u_pair(R, p, 0, 0), u_pair(R, p, 0, 1)
        for st in range(1, 4):
            a_, b_ = T0 + 2 + 4*(st & 1), T0 + 4 + 4*(st & 1)
            tm = T0 + 12
            k(f"v_pk_fma_f32 {v(tm,2)}, {v(lam,2)}, {v(HR,2)}, {v(u_pair(R,p,st,0),2)} op_sel_hi:[0,1,1]")
            k(f"v_pk_fma_f32 {v(tm+2,2)}, {v(lam,2)}, {v(HI,2)}, {v(u_pair(R,p,st,1),2)} op_sel_hi:[0,1,1]")
            k(f"v_pk_fma_f32 {v(a_,2)}, {v(lam,2)}, {v(HI,2)}, {v(tm,2)} op_sel:[1,0,0] op_sel_hi:[1,1,1] neg_lo:[1,0,0] neg_hi:[1,0,0]")
            k(f"v_pk_fma_f32 {v(b_,2)}, {v(lam,2)}, {v(HR,2)}, {v(tm+2,2)} op_sel:[1,0,0] op_sel_hi:[1,1,1]")
            HR, HI = a_, b_
        ea = R.EA + 2*p
        k(f"v_mov_b32 v{ea}, v{HR}\nv_mov_b32 v{ea+1}, v{HI}")
        e = T0 + 16
        k(f"v_fma_f32 v{e}, v{lam+2}, v{HR}, v{HR+1}\nv_fma_f32 v{e+1}, v{lam+2}, v{HI}, v{HI+1}")
        k(f"v_fma_f32 v{e}, -v{lam+3}, v{HI}, v{e}\nv_fma_f32 v{e+1}, v{lam+3}, v{HR}, v{e+1}")
        k(f"ds_write_b64 v{T0}, {v(e,2)} offset:{128*p}")
    k("s_waitcnt lgkmcnt(0)")
    k(f"v_mov_b32 v{T0}, {L_CNT}\nv_mov_b32 v{T0+1}, 1")
    lds_signal(k, T0, T0+1)

def gen_features(k, t, R, i, src_tile0, PH):
    T0 = R.TMP
    QB = R.WF
    AOP = R.WF + 12
    PV = R.WF + 36
    aW = T0 + 20
    for tt in range(5):
        a0 = R.accT(src_tile0 + tt, i)
        k(f"v_cvt_pk_bf16_f32 v{QB+2*tt}, v{a0}, v{a0+1}\nv_cvt_pk_bf16_f32 v{QB+2*tt+1}, v{a0+2}, v{a0+3}")
    for z in (QB+10, QB+11, AOP+10, AOP+11, AOP+22, AOP+23): k(f"v_mov_b32 v{z}, 0")
    def rd(it):
        b = AOP + 12*(it & 1)
        for m in range(2):
            for h in range(2): k(f"ds_read_b64_tr_b16 {v(b + 4*m + 2*h, 2)}, v{aW} offset:{40*(8*m + 4*h) + 8*it}")
        k(f"ds_read_b64_tr_b16 {v(b + 8, 2)}, v{aW} offset:{40*16 + 8*it}")
    rd(0)
    for it in range(5):
        if it < 4: rd(it + 1)
        k(f"s_waitcnt lgkmcnt({5 if it < 4 else 0})")
        b = AOP + 12*(it & 1); d = v(PV + 4*it, 4)
        k(f"v_mfma_f32_16x16x32_bf16 {d}, {v(b,4)}, {v(QB,4)}, 0")
        k(f"v_mfma_f32_16x16x32_bf16 {d}, {v(b+4,4)}, {v(QB+4,4)}, {d}")
        k(f"v_mfma_f32_16x16x32_bf16 {d}, {v(b+8,4)}, {v(QB+8,4)}, {d}")
    MX, MN = T0 + 2, T0 + 3
    k(f"v_max3_f32 v{MX}, v{PV}, v{PV+1}, v{PV+2}\nv_min3_f32 v{MN}, v{PV}, v{PV+1}, v{PV+2}")
    for j in range(3, 19, 2): k(f"v_max3_f32 v{MX}, v{MX}, v{PV+j}, v{PV+j+1}\nv_min3_f32 v{MN}, v{MN}, v{PV+j}, v{PV+j+1}")
    k(f"v_max_f32 v{MX}, v{MX}, v{PV+19}\nv_min_f32 v{MN}, v{MN}, v{PV+19}")
    CL, BPm = T0 + 4, T0 + 6
    k(f"v_mov_b32 v{CL}, {LOG2E:#x}\nv_mul_f32 v{BPm}, v{CL}, v{MX}\nv_mul_f32 v{BPm+1}, v{CL}, v{MN}")
    EP = QB
    EM = T0 + 24
    for j in range(0, 20, 2):
        k(f"v_pk_fma_f32 {v(EP+j,2)}, {v(PV+j,2)}, {v(CL,2)}, {v(BPm,2)} op_sel_hi:[1,0,0] neg_lo:[0,0,1] neg_hi:[0,0,1]")
        k(f"v_pk_fma_f32 {v(EM+j,2)}, {v(PV+j,2)}, {v(CL,2)}, {v(BPm,2)} op_sel:[0,0,1] op_sel_hi:[1,0,1] neg_lo:[1,0,0] neg_hi:[1,0,0]")
    for j in range(20): k(f"v_exp_f32 v{EP+j}, v{EP+j}\nv_exp_f32 v{EM+j}, v{EM+j}")
    SP, SM = T0 + 8, T0 + 10
    k(f"v_pk_add_f32 {v(SP,2)}, {v(EP,2)}, {v(EP+2,2)}\nv_pk_add_f32 {v(SM,2)}, {v(EM,2)}, {v(EM+2,2)}")
    for j in range(4, 20, 2): k(f"v_pk_add_f32 {v(SP,2)}, {v(SP,2)}, {v(EP+j,2)}\nv_pk_add_f32 {v(SM,2)}, {v(SM,2)}, {v(EM+j,2)}")
    k(f"v_add_f32 v{SP}, v{SP}, v{SP+1}\nv_add_f32 v{SM}, v{SM}, v{SM+1}\nv_rcp_f32 v{SP}, v{SP}\nv_rcp_f32 v{SM}, v{SM}")
    for j in range(0, 20, 2):
        k(f"v_pk_mul_f32 {v(EP+j,2)}, {v(EP+j,2)}, {v(SP,2)} op_sel_hi:[1,0]\nv_pk_mul_f32 {v(EM+j,2)}, {v(EM+j,2)}, {v(SM,2)} op_sel_hi:[1,0]")
    for j in range(10): k(f"v_cvt_pk_bf16_f32 v{PH+j}, v{EP+2*j}, v{EP+2*j+1}")
    for j in range(10): k(f"v_cvt_pk_bf16_f32 v{PH+10+j}, v{EM+2*j}, v{EM+2*j+1}")

def feat_addr(k, R):
    T0 = R.TMP
    k(f"v_and_b32 v{T0+2}, 3, v{R.vN}\nv_lshrrev_b32 v{T0+3}, 2, v{R.vN}")
    k(f"v_mul_u32_u24 v{T0+20}, 800, v{T0+2}\nv_mul_u32_u24 v{T0+3}, 40, v{T0+3}\nv_add_u32 v{T0+20}, v{T0+20}, v{T0+3}\nv_add_u32 v{T0+20}, {L_WPHI}, v{T0+20}")
    k(f"v_cmp_eq_u32 vcc, v{T0+2}, v{R.vG}\nv_mov_b32 v{T0+3}, {L_ZERO}\nv_cndmask_b32 v{T0+20}, v{T0+3}, v{T0+20}, vcc")

def tok_local(k, R, i, dst, tmp):
    k(f"v_lshrrev_b32 v{dst}, 2, v{R.vN}\nv_lshlrev_b32 v{dst}, 3, v{dst}\nv_and_b32 v{tmp}, 1, v{R.vN}\nv_lshl_add_u32 v{dst}, v{tmp}, 2, v{dst}")
    k(f"v_bfe_u32 v{tmp}, v{R.vN}, 1, 1\nv_add_u32 v{dst}, v{dst}, v{tmp}")
    if i: k(f"v_add_u32 v{dst}, {2*i}, v{dst}")

def gen_stageB(k, t, R, sWS, trbase):
    T0 = R.TMP
    k(f"v_mov_b32 v{T0}, {L_CNT + 8}")
    lds_wait(k, T0, T0+1, 1, 4)
    aC, aTW, aTR, vSt = T0, T0 + 1, T0 + 2, T0 + 3
    k(f"s_lshl_b32 s4, s{sW}, 2\nv_add_u32 v{aC}, s4, v{R.vG}\nv_lshlrev_b32 v{aC}, 9, v{aC}\nv_lshl_add_u32 v{aC}, v{R.vN}, 3, v{aC}\nv_add_u32 v{aC}, {L_CTAB}, v{aC}")
    CV = R.WF
    for p in range(t.nP): k(f"ds_read_b64 {v(CV+2*p,2)}, v{aC} offset:{128*p}")
    k(f"s_mul_i32 s4, s{sW}, {t.nP*2560}\ns_add_u32 s4, s4, {trbase}")
    k(f"v_mul_u32_u24 v{aTW}, 80, v{R.vN}\nv_lshl_add_u32 v{aTW}, v{R.vG}, 4, v{aTW}\nv_add_u32 v{aTW}, s4, v{aTW}")
    k(f"v_lshrrev_b32 v{aTR}, 2, v{R.vN}\nv_lshl_add_u32 v{aTR}, v{R.vG}, 3, v{aTR}\nv_mul_u32_u24 v{aTR}, 80, v{aTR}\nv_and_b32 v{vSt}, 3, v{R.vN}\nv_lshl_add_u32 v{aTR}, v{vSt}, 3, v{aTR}\nv_add_u32 v{aTR}, s4, v{aTR}")
    k(f"v_lshlrev_b32 v{vSt}, 4, v{R.vLane}")
    k("s_waitcnt lgkmcnt(0)")
    H = T0 + 4
    tm = T0 + 8
    PK = T0 + 12
    for p in range(t.nP):
        lam = R.LAM + 4*p; c = CV + 2*p; ea = R.EA + 2*p
        k(f"v_mov_b32 v{H}, v{c}\nv_mov_b32 v{H+2}, v{c+1}")
        k(f"v_fma_f32 v{H+1}, v{lam+2}, v{c}, v{ea}\nv_fma_f32 v{H+3}, v{lam+2}, v{c+1}, v{ea+1}")
        k(f"v_fma_f32 v{H+1}, -v{lam+3}, v{c+1}, v{H+1}\nv_fma_f32 v{H+3}, v{lam+3}, v{c}, v{H+3}")
        HR, HI = H, H + 2
        for st in range(4):
            ur, ui = u_pair(R, p, st, 0), u_pair(R, p, st, 1)
            k(f"v_pk_fma_f32 {v(tm,2)}, {v(lam,2)}, {v(HR,2)}, {v(ur,2)} op_sel_hi:[0,1,1]")
            k(f"v_pk_fma_f32 {v(tm+2,2)}, {v(lam,2)}, {v(HI,2)}, {v(ui,2)} op_sel_hi:[0,1,1]")
            k(f"v_pk_fma_f32 {v(ur,2)}, {v(lam,2)}, {v(HI,2)}, {v(tm,2)} op_sel:[1,0,0] op_sel_hi:[1,1,1] neg_lo:[1,0,0] neg_hi:[1,0,0]")
            k(f"v_pk_fma_f32 {v(ui,2)}, {v(lam,2)}, {v(HR,2)}, {v(tm+2,2)} op_sel:[1,0,0] op_sel_hi:[1,1,1]")
            HR, HI = ur, ui
        for im in range(2):
            r = [u_pair(R, p, st, im) for st in range(4)]
            b = PK + 4*im
            k(f"v_cvt_pk_bf16_f32 v{b}, v{r[0]}, v{r[1]}\nv_cvt_pk_bf16_f32 v{b+1}, v{r[2]}, v{r[3]}")
            k(f"v_cvt_pk_bf16_f32 v{b+2}, v{r[0]+1}, v{r[1]+1}\nv_cvt_pk_bf16_f32 v{b+3}, v{r[2]+1}, v{r[3]+1}")
            k(f"ds_write_b128 v{aTW}, {v(b,4)} offset:{p*2560 + im*1280}")
    k("s_waitcnt lgkmcnt(0)")
    FR = R.WF + 8
    k(f"s_lshl_b32 s4, s{sC}, 3\ns_lshl_b32 s5, s{sW}, 1\ns_add_u32 s4, s4, s5\ns_mul_i32 s4, s4, 40960")
    k(f"s_mul_i32 s5, s{sHG}, 5\ns_add_u32 s5, s5, {t.p0}\ns_lshl_b32 s5, s5, 10\ns_add_u32 s4, s4, s5\ns_add_u32 s4, s4, {WS_S}")
    n = 0
    for p in range(t.nP):
        for i2 in range(2):
            f = FR + 4*n; n += 1
            k(f"ds_read_b64_tr_b16 {v(f,2)}, v{aTR} offset:{p*2560 + 32*i2}\nds_read_b64_tr_b16 {v(f+2,2)}, v{aTR} offset:{p*2560 + 32*i2 + 320}")
    n = 0
    for p in range(t.nP):
        for i2 in range(2):
            f = FR + 4*n
            k(f"s_waitcnt lgkmcnt({min(15, 2*(2*t.nP - 1 - n))})")
            k(f"s_add_u32 s5, s4, {i2*40960 + p*1024}")
            k(f"buffer_store_dwordx4 {v(f,4)}, v{vSt}, {s(sWS,4)}, s5 offen")
            n += 1

def gen_compute(k, t, name, P, stop=None):
    R = CR(t)
    sWS = 40
    k.label(f"{name}_cp{t.typ}")
    gen_compute_prologue(k, t, R, sWS)
    P.stamp()
    k("s_barrier")
    P.stamp()
    gen_mainloop(k, t, R)
    P.stamp()
    k("s_nop 7")
    if stop == "acc":
        k(f"s_lshl_b32 s4, s2, 2\ns_add_u32 s4, s4, s{sW}\ns_lshl_b32 s4, s4, 15\ns_add_u32 s4, s4, 0x2000000")
        k(f"s_mov_b32 s{sWS+2}, 0x4000000")
        k(f"v_lshlrev_b32 v{R.TMP}, 9, v{R.vLane}")
        for r in range(0, 8*t.ntile, 4): k(f"buffer_store_dwordx4 {v(r,4)}, v{R.TMP}, {s(sWS,4)}, s4 offen offset:{4*r}")
        k(f"s_branch {name}_end")
        return
    gen_stageA(k, t, R)
    P.stamp()
    feat_addr(k, R)
    T0 = R.TMP
    if t.typ == "B":
        PH = R.XF - 4
        for i in range(2):
            gen_features(k, t, R, i, 0, PH)
            tok_local(k, R, i, T0+2, T0+3)
            k(f"v_lshlrev_b32 v{T0+2}, 4, v{T0+2}\nv_mul_u32_u24 v{T0+3}, {32*5120}, v{R.vG}\nv_add_u32 v{T0+2}, v{T0+2}, v{T0+3}")
            k(f"s_lshl_b32 s4, s{sHG}, 7\ns_lshl_b32 s5, s{sC}, 1\ns_add_u32 s4, s4, s5\ns_lshr_b32 s5, s{sW}, 1\ns_add_u32 s4, s4, s5\ns_mul_i32 s4, s4, 5120")
            k(f"s_and_b32 s5, s{sW}, 1\ns_lshl_b32 s5, s5, 9\ns_add_u32 s4, s4, s5\ns_add_u32 s4, s4, {WS_PQ}\ns_add_u32 s5, s4, 4096")
            for m in range(4): k(f"buffer_store_dwordx4 {v(PH+4*m,4)}, v{T0+2}, {s(sWS,4)}, s4 offen offset:{1024*m}")
            k(f"buffer_store_dwordx4 {v(PH+16,4)}, v{T0+2}, {s(sWS,4)}, s5 offen")
            k("s_nop 1")
        P.stamp()
        gen_stageB(k, t, R, sWS, 0)
    else:
        PH = R.XF - 4
        VP = R.WF + 20
        for i in range(2):
            gen_features(k, t, R, i, 0, PH)
            for tt in range(5):
                a0 = R.accT(5 + tt, i)
                k(f"v_cvt_pk_bf16_f32 v{VP+2*tt}, v{a0}, v{a0+1}\nv_cvt_pk_bf16_f32 v{VP+2*tt+1}, v{a0+2}, v{a0+3}")
            k(f"v_mov_b32 v{VP+10}, 0x3f80\nv_mov_b32 v{VP+11}, 0")
            tok_local(k, R, i, T0+2, T0+3)
            k(f"s_lshl_b32 s4, s{sW}, 5\nv_add_u32 v{T0+2}, s4, v{T0+2}\nv_mul_u32_u24 v{T0+2}, 144, v{T0+2}\nv_mul_u32_u24 v{T0+3}, 18432, v{R.vG}\nv_add_u32 v{T0+2}, v{T0+2}, v{T0+3}")
            for j in range(5): k(f"ds_write_b128 v{T0+2}, {v(PH+4*j,4)} offset:{16*j}")
            for j in range(3): k(f"ds_write_b128 v{T0+2}, {v(VP+4*j,4)} offset:{80+16*j}")
            k("s_waitcnt lgkmcnt(0)")
        k(f"v_mov_b32 v{T0}, {L_CNT + 4}\nv_mov_b32 v{T0+1}, 1")
        lds_signal(k, T0, T0+1)
        lds_wait(k, T0, T0+1, 4, 4)
        P.stamp()
        aK = T0 + 2
        k(f"v_lshrrev_b32 v{aK}, 2, v{R.vN}\nv_lshl_add_u32 v{aK}, v{R.vG}, 3, v{aK}\nv_mul_u32_u24 v{aK}, 144, v{aK}\nv_and_b32 v{T0+3}, 3, v{R.vN}\nv_lshl_add_u32 v{aK}, v{T0+3}, 3, v{aK}")
        k(f"s_mul_i32 s4, s{sW}, 18432\nv_add_u32 v{aK}, s4, v{aK}")
        KD = R.WF
        OPS = R.WF + 24
        def rdk(ks):
            b = OPS + 20*(ks & 1)
            for o, off in enumerate((0, 32, 64, 80, 112)):
                k(f"ds_read_b64_tr_b16 {v(b+4*o,2)}, v{aK} offset:{ks*4608 + off}\nds_read_b64_tr_b16 {v(b+4*o+2,2)}, v{aK} offset:{ks*4608 + off + 576}")
        rdk(0)
        for ks in range(4):
            if ks < 3: rdk(ks + 1)
            k(f"s_waitcnt lgkmcnt({10 if ks < 3 else 0})")
            b = OPS + 20*(ks & 1)
            for ft in range(3):
                for vt in range(2):
                    d = v(KD + 4*(ft*2 + vt), 4)
                    k(f"v_mfma_f32_16x16x32_bf16 {d}, {v(b+4*ft,4)}, {v(b+12+4*vt,4)}, {d if ks else 0}")
        vo = T0 + 4
        k(f"v_mul_u32_u24 v{vo}, 80, v{R.vN}\nv_lshl_add_u32 v{vo}, v{R.vG}, 3, v{vo}\nv_mov_b32 v{vo+4}, 0x7fffffff")
        k(f"v_cmp_gt_u32 vcc, 5, v{R.vN}\nv_cndmask_b32 v{vo+1}, v{vo+4}, v{vo}, vcc")
        k(f"v_cmp_gt_u32 vcc, 2, v{R.vG}\nv_cndmask_b32 v{vo+2}, v{vo+4}, v{vo}, vcc\nv_cndmask_b32 v{vo+3}, v{vo+4}, v{vo+1}, vcc")
        k(f"s_lshl_b32 s4, s{sHG}, 2\ns_add_u32 s4, s4, s{sW}\ns_lshl_b32 s4, s4, 4\ns_add_u32 s4, s4, s{sC}\ns_lshl_b32 s4, s4, 11\ns_add_u32 s4, s4, {WS_KVP}")
        for ft in range(3):
            for vt in range(2):
                d = KD + 4*(ft*2 + vt); pk = T0 + 10 + 2*((ft*2 + vt) & 1)
                k(f"v_cvt_pk_bf16_f32 v{pk}, v{d}, v{d+1}\nv_cvt_pk_bf16_f32 v{pk+1}, v{d+2}, v{d+3}")
                k(f"buffer_store_dwordx2 {v(pk,2)}, v{vo + vt + (2 if ft == 2 else 0)}, {s(sWS,4)}, s4 offen offset:{vt*1280 + 32*ft}")
        P.stamp()
        gen_stageB(k, t, R, sWS, 73728)
    P.stamp()
    k(f"s_branch {name}_fin")

H_LR, H_LI, H_LD, H_WS, H_DBG, H_NONCE = 8, 12, 16, 20, 24, 34
def gen_helper_early(k, t):
    k(f"s_load_dwordx2 s[4:5], s[0:1], {A_LRE}\ns_load_dwordx2 s[6:7], s[0:1], {A_LIM}")
    k(f"s_load_dwordx2 s[32:33], s[0:1], {A_LOGDT}\ns_load_dwordx2 s[36:37], s[0:1], {A_WS}\ns_load_dwordx2 s[{H_DBG}:{H_DBG+1}], s[0:1], {A_DBG}")
    k(f"s_memrealtime s[{H_NONCE}:{H_NONCE+1}]")
    k("s_waitcnt lgkmcnt(0)")
    srd(k, H_LR, 4, 1280); srd(k, H_LI, 6, 1280); srd(k, H_LD, 32, 1280); srd(k, H_WS, 36, WS_SIZE)
    k(f"s_or_b32 s{H_NONCE}, s{H_NONCE}, 1")
    k(f"v_mov_b32 v100, s{H_NONCE}\nv_mov_b32 v101, s{H_NONCE+1}\nv_mov_b32 v102, 0\nv_mov_b32 v103, 0")
    k(f"s_lshl_b32 s4, s{sQ}, 3\nv_mov_b32 v104, s4")
    k("s_mov_b64 s[60:61], exec\ns_mov_b64 exec, 1")
    k(f"global_atomic_cmpswap_x2 v[106:107], v104, v[100:103], s[{H_DBG}:{H_DBG+1}] sc0 sc1")
    k("s_mov_b64 exec, s[60:61]")
    k(f"v_and_b32 v20, {63 if t.typ == 'B' else 15}, v0")
    k(f"s_mul_i32 s4, s{sHG}, 80\ns_add_u32 s4, s4, {16*t.p0}\nv_add_u32 v21, s4, v20")
    k("v_lshlrev_b32 v22, 1, v21")
    load_lam_inputs(k, 22, 23, 24, 25, H_LR, H_LI, H_LD)

def gen_helper(k, t, name, P):
    sWS, sN = H_WS, H_NONCE
    vCh, vP = 20, 21
    k("s_waitcnt vmcnt(0)")
    k("v_readfirstlane_b32 s4, v106\nv_readfirstlane_b32 s5, v107")
    k(f"s_or_b32 s6, s4, s5\ns_cmp_eq_u32 s6, 0\ns_cselect_b32 s{sN}, s{sN}, s4\ns_cselect_b32 s{sN+1}, s{sN+1}, s5")
    for x in (23, 24, 25): k(f"v_lshlrev_b32 v{x}, 16, v{x}")
    L8, L128 = 26, 28
    lam_calc(k, 23, 24, 25, L8, L8+1, 30, 31)
    for _ in range(3): csquare(k, L8, L8+1, 30)
    k(f"v_mov_b32 v{L128}, v{L8}\nv_mov_b32 v{L128+1}, v{L8+1}")
    for _ in range(4): csquare(k, L128, L128+1, 30)
    lq = k.newlabel("nq")
    k(f"s_or_b32 s4, s{sQ}, s{sC}\ns_cmp_lg_u32 s4, 0\ns_cbranch_scc1 {lq}")
    k(f"v_mov_b32 v108, s{sN}\nv_mov_b32 v109, s{sN+1}\nv_mov_b32 v110, {WS_NONCE}")
    k(f"buffer_store_dwordx2 v[108:109], v110, {s(sWS,4)}, 0 offen")
    k.label(lq)
    k(f"v_mov_b32 v30, {L_CNT}")
    lds_wait(k, 30, 31, 4, 4)
    P.stamp()
    E = 32
    k(f"v_lshlrev_b32 v30, 3, v{vCh}\nv_add_u32 v31, {L_CTAB}, v30\nv_add_u32 v30, {L_ETAB}, v30")
    for sg in range(16): k(f"ds_read_b64 {v(E+2*sg,2)}, v30 offset:{512*sg}")
    def cmad(d, lam, a_, b_):
        k(f"v_fma_f32 v64, v{lam}, v{a_}, v{b_}\nv_fma_f32 v65, v{lam}, v{a_+1}, v{b_+1}")
        k(f"v_fma_f32 v64, -v{lam+1}, v{a_+1}, v64\nv_fma_f32 v{d+1}, v{lam+1}, v{a_}, v65\nv_mov_b32 v{d}, v64")
    A = 68
    k(f"v_mov_b32 v{A+2}, s{sN}\nv_mov_b32 v{A+3}, s{sN+1}")
    k("s_waitcnt lgkmcnt(0)")
    k(f"v_mov_b32 v{A}, v{E}\nv_mov_b32 v{A+1}, v{E+1}")
    for sg in range(1, 16): cmad(A, L8, A, E + 2*sg)
    k(f"v_lshlrev_b32 v66, 4, v{vP}\ns_mul_i32 s4, s{sC}, 10240\ns_add_u32 s4, s4, {WS_E}")
    if t.typ == "A":
        k("v_and_b32 v67, 63, v0\nv_cmp_gt_u32 vcc, 16, v67\nv_mov_b32 v67, 0x7fffffff\nv_cndmask_b32 v67, v67, v66, vcc")
    else: k("v_mov_b32 v67, v66")
    k(f"buffer_store_dwordx4 {v(A,4)}, v67, {s(sWS,4)}, s4 offen sc1")
    P.stamp()
    B0 = 72
    l1, l2, ld = k.newlabel("poll"), k.newlabel("chk"), k.newlabel("lbdone")
    k(f"v_mov_b32 v{A}, 0\nv_mov_b32 v{A+1}, 0")
    k(f"s_cmp_eq_u32 s{sC}, 0\ns_cbranch_scc1 {ld}")
    k.label(l1)
    for cc in range(15):
        k(f"s_cmp_le_u32 s{sC}, {cc}\ns_cbranch_scc1 {l2}")
        k(f"s_mov_b32 s4, {WS_E + cc*10240}\nbuffer_load_dwordx4 {v(B0+4*cc,4)}, v66, {s(sWS,4)}, s4 offen sc1")
    k.label(l2)
    k("s_waitcnt vmcnt(0)\ns_mov_b64 s[6:7], 0")
    l3 = k.newlabel("chkd")
    for cc in range(15):
        k(f"s_cmp_le_u32 s{sC}, {cc}\ns_cbranch_scc1 {l3}")
        k(f"v_cmp_ne_u64 vcc, s[{sN}:{sN+1}], {v(B0+4*cc+2,2)}\ns_or_b64 s[6:7], s[6:7], vcc")
    k.label(l3)
    l4 = k.newlabel("ok")
    k(f"s_cmp_eq_u64 s[6:7], 0\ns_cbranch_scc1 {l4}\ns_sleep 4\ns_branch {l1}")
    k.label(l4)
    P.stamp()
    for cc in range(15):
        k(f"s_cmp_le_u32 s{sC}, {cc}\ns_cbranch_scc1 {ld}")
        cmad(A, L128, A, B0 + 4*cc)
    k.label(ld)
    P.stamp()
    for sg in range(16):
        k(f"ds_write_b64 v31, {v(A,2)} offset:{512*sg}")
        if sg < 15: cmad(A, L8, A, E + 2*sg)
    k("s_waitcnt lgkmcnt(0)")
    k(f"v_mov_b32 v30, {L_CNT + 8}\nv_mov_b32 v31, 1")
    lds_signal(k, 30, 31)

def gen_side(k, name):
    sWS, sA, sB_, sLR, sLI, sLD = 8, 12, 16, 20, 32, 36
    sJob, sT0, sT1, sK, sNT = 44, 45, 46, 47, 48
    lw, lg, ln, done = f"{name}_sideW", f"{name}_sideG", f"{name}_sideN", f"{name}_fin"
    k(f"s_load_dwordx2 s[4:5], s[0:1], {A_WS}")
    k(f"s_mul_i32 s{sJob}, s2, 3\ns_add_u32 s{sJob}, s{sJob}, s{sW}\ns_sub_u32 s{sJob}, s{sJob}, 5")
    k("v_and_b32 v2, 63, v0\nv_and_b32 v3, 15, v0\nv_bfe_u32 v4, v0, 4, 2\nv_lshlrev_b32 v5, 4, v2")
    k("s_waitcnt lgkmcnt(0)"); srd(k, sWS, 4, WS_SIZE)
    k(f"s_cmp_ge_u32 s{sJob}, 400\ns_cbranch_scc1 {lw}")
    k(f"s_load_dwordx4 s[4:7], s[0:1], {A_CRE}\ns_load_dwordx4 s[52:55], s[0:1], {A_LRE}\ns_load_dwordx2 s[50:51], s[0:1], {A_LOGDT}")
    k(f"s_mul_i32 s{sT0}, s{sJob}, 1639\ns_lshr_b32 s{sT0}, s{sT0}, 16\ns_mul_i32 s{sK}, s{sT0}, 40\ns_sub_u32 s{sK}, s{sJob}, s{sK}\ns_lshl_b32 s{sNT}, s{sT0}, 2")
    k("s_waitcnt lgkmcnt(0)")
    srd(k, sA, 4, 819200); srd(k, sB_, 6, 819200); srd(k, sLR, 52, 1280); srd(k, sLI, 54, 1280); srd(k, sLD, 50, 1280)
    k(f"s_lshl_b32 s{sT0}, s{sK}, 5\nv_lshl_add_u32 v6, v3, 1, s{sT0}")
    load_lam_inputs(k, 6, 7, 8, 9, sLR, sLI, sLD)
    k(f"v_mul_u32_u24 v10, 1280, v3\nv_and_b32 v11, 1, v4\nv_lshl_add_u32 v10, v11, 4, v10")
    k(f"s_mul_i32 s{sT1}, s{sNT}, {16*1280}\ns_add_u32 s{sT1}, s{sT1}, s{sT0}")
    for j in range(4):
        k(f"s_add_u32 s{sT0}, s{sT1}, {j*16*1280}")
        k(f"buffer_load_dwordx4 {v(32+8*j,4)}, v10, {s(sA,4)}, s{sT0} offen\nbuffer_load_dwordx4 {v(36+8*j,4)}, v10, {s(sB_,4)}, s{sT0} offen")
    loader_tail(k, 11)
    k("s_waitcnt vmcnt(0)")
    for x in (7, 8, 9): k(f"v_lshlrev_b32 v{x}, 16, v{x}")
    lam_calc(k, 7, 8, 9, 12, 13, 14, 15)
    k("v_add_f32 v12, -1.0, v12\nv_mul_f32 v14, v7, v7\nv_fmac_f32 v14, v8, v8\nv_rcp_f32 v14, v14")
    k("v_mul_f32 v16, v12, v7\nv_fmac_f32 v16, v13, v8\nv_mul_f32 v17, v13, v7\nv_fma_f32 v17, -v12, v8, v17")
    k("v_add_f32 v14, v14, v14\nv_mul_f32 v16, v16, v14\nv_mul_f32 v17, v17, v14")
    k(f"s_sub_u32 s{sT0}, s{sW}, 5\ns_lshl_b32 s{sT0}, s{sT0}, 7\ns_add_u32 s{sT0}, s{sT0}, {L_COEF}")
    k(f"v_lshl_add_u32 v18, v3, 3, s{sT0}\nds_write_b64 v18, v[16:17]")
    k(f"v_lshl_add_u32 v18, v11, 6, s{sT0}\ns_waitcnt lgkmcnt(0)")
    for j in range(4): k(f"ds_read_b128 {v(64+4*j,4)}, v18 offset:{16*j}")
    k("v_cmp_gt_u32 vcc, 2, v4")
    k("s_waitcnt lgkmcnt(0)")
    for c in range(8):
        cr, ci = 64 + 2*c, 65 + 2*c
        k(f"v_sub_f32 v20, 0, v{ci}\nv_sub_f32 v21, 0, v{cr}\nv_cndmask_b32 v{cr}, v20, v{cr}, vcc\nv_cndmask_b32 v{ci}, v21, v20, vcc")
    k(f"s_mul_i32 s{sT0}, s{sNT}, 40\ns_add_u32 s{sT0}, s{sT0}, s{sK}\ns_lshl_b32 s{sT0}, s{sT0}, 10\ns_add_u32 s{sT0}, s{sT0}, {WS_CF}")
    for j in range(4):
        for c in range(8):
            re, im = 32 + 8*j + (c >> 1), 36 + 8*j + (c >> 1)
            if c & 1: k(f"v_and_b32 v20, 0xffff0000, v{re}\nv_and_b32 v21, 0xffff0000, v{im}")
            else: k(f"v_lshlrev_b32 v20, 16, v{re}\nv_lshlrev_b32 v21, 16, v{im}")
            k(f"v_mul_f32 v{80+c}, v{64+2*c}, v20\nv_fmac_f32 v{80+c}, v{65+2*c}, v21")
        o = 88 + 4*(j & 1)
        for c in range(4): k(f"v_cvt_pk_bf16_f32 v{o+c}, v{80+2*c}, v{81+2*c}")
        k(f"s_add_u32 s{sT1}, s{sT0}, {j*40960}\nbuffer_store_dwordx4 {v(o,4)}, v5, {s(sWS,4)}, s{sT1} offen")
    k(f"s_branch {done}")
    k.label(lw)
    k(f"s_cmp_ge_u32 s{sJob}, 600\ns_cbranch_scc1 {lg}")
    k(f"s_load_dwordx2 s[4:5], s[0:1], {A_WO}")
    k(f"s_sub_u32 s{sJob}, s{sJob}, 400\ns_mul_i32 s{sT0}, s{sJob}, 3277\ns_lshr_b32 s{sT0}, s{sT0}, 16\ns_mul_i32 s{sK}, s{sT0}, 20\ns_sub_u32 s{sK}, s{sJob}, s{sK}\ns_lshl_b32 s{sNT}, s{sT0}, 2")
    k("s_waitcnt lgkmcnt(0)"); srd(k, sA, 4, 819200)
    k(f"s_lshr_b32 s{sT0}, s{sK}, 1\ns_mul_i32 s{sT0}, s{sT0}, 80\ns_and_b32 s{sT1}, s{sK}, 1\ns_lshl_b32 s{sT1}, s{sT1}, 3\ns_add_u32 s{sT0}, s{sT0}, s{sT1}")
    k(f"s_sub_u32 s{sT1}, s{sK}, 16\ns_mul_i32 s{sT1}, s{sT1}, 160\ns_add_u32 s{sT1}, s{sT1}, 16")
    k(f"s_cmp_lt_u32 s{sK}, 16\ns_cselect_b32 s{sT0}, s{sT0}, s{sT1}\ns_cselect_b32 s49, 4, 80")
    k(f"v_mul_u32_u24 v10, {20*1280}, v4\nv_lshl_add_u32 v10, v3, 1, v10")
    k(f"s_mul_i32 s{sT0}, s{sT0}, 1280\ns_lshl_b32 s{sT1}, s{sNT}, 5\ns_add_u32 s{sT0}, s{sT0}, s{sT1}\ns_mul_i32 s49, s49, 1280")
    for t4 in range(4):
        for j in range(8):
            d = 32 + 8*t4 + j
            if j < 4: k(f"s_add_u32 s{sT1}, s{sT0}, {j*1280 + t4*32}")
            else: k(f"s_add_u32 s{sT1}, s{sT0}, s49\ns_add_u32 s{sT1}, s{sT1}, {(j-4)*1280 + t4*32}")
            k(f"buffer_load_ushort v{d}, v10, {s(sA,4)}, s{sT1} offen")
    k(f"s_mul_i32 s{sT0}, s{sNT}, 20\ns_add_u32 s{sT0}, s{sT0}, s{sK}\ns_lshl_b32 s{sT0}, s{sT0}, 10\ns_add_u32 s{sT0}, s{sT0}, {WS_WF}")
    loader_tail(k, 32)
    k("s_waitcnt vmcnt(0)")
    for t4 in range(4):
        for c in range(4): k(f"v_lshl_or_b32 v{64+4*t4+c}, v{33+8*t4+2*c}, 16, v{32+8*t4+2*c}")
        k(f"s_add_u32 s{sT1}, s{sT0}, {t4*20480}\nbuffer_store_dwordx4 {v(64+4*t4,4)}, v5, {s(sWS,4)}, s{sT1} offen")
    k(f"s_branch {done}")
    k.label(lg)
    k(f"s_cmp_ge_u32 s{sJob}, 728\ns_cbranch_scc1 {ln}")
    k(f"s_load_dwordx2 s[4:5], s[0:1], {A_X}\ns_load_dwordx2 s[6:7], s[0:1], {A_GATE}")
    k(f"s_sub_u32 s{sJob}, s{sJob}, 600\ns_mul_i32 s{sT0}, s{sJob}, {16*1280}")
    k("s_waitcnt lgkmcnt(0)"); srd(k, sA, 4, 2621440); srd(k, sB_, 6, 1280)
    k("v_lshrrev_b32 v6, 3, v2\nv_and_b32 v7, 7, v2\nv_lshlrev_b32 v11, 4, v7\nv_mul_u32_u24 v10, 1280, v6\nv_add_u32 v10, v10, v11")
    k(f"s_add_u32 s{sT1}, s{sT0}, {8*1280}")
    for c in range(10):
        k(f"buffer_load_dwordx4 {v(32+4*c,4)}, v10, {s(sA,4)}, s{sT0} offen offset:{128*c}")
        k(f"buffer_load_dwordx4 {v(72+4*c,4)}, v10, {s(sA,4)}, s{sT1} offen offset:{128*c}")
        k(f"buffer_load_dwordx4 {v(112+4*c,4)}, v11, {s(sB_,4)}, 0 offen offset:{128*c}")
    loader_tail(k, 30)
    k("v_mov_b32 v12, 0\nv_mov_b32 v13, 0\ns_waitcnt vmcnt(0)")
    for r in range(40):
        k(f"v_lshlrev_b32 v15, 16, v{112+r}\nv_and_b32 v16, 0xffff0000, v{112+r}")
        for acc, xb in ((12, 32), (13, 72)):
            k(f"v_lshlrev_b32 v14, 16, v{xb+r}\nv_fmac_f32 v{acc}, v14, v15\nv_and_b32 v14, 0xffff0000, v{xb+r}\nv_fmac_f32 v{acc}, v14, v16")
    for acc in (12, 13):
        k(f"v_add_f32_dpp v{acc}, v{acc}, v{acc} quad_perm:[1,0,3,2] row_mask:0xf bank_mask:0xf")
        k(f"v_add_f32_dpp v{acc}, v{acc}, v{acc} quad_perm:[2,3,0,1] row_mask:0xf bank_mask:0xf")
        k(f"v_add_f32_dpp v{acc}, v{acc}, v{acc} row_half_mirror row_mask:0xf bank_mask:0xf")
    k("v_cmp_eq_u32 vcc, 1, v7\nv_cndmask_b32 v12, v12, v13, vcc")
    k(f"v_mul_f32 v12, {LOG2E:#x}, v12\nv_exp_f32 v12, -v12\nv_add_f32 v12, 1.0, v12\nv_rcp_f32 v12, v12")
    k(f"s_lshl_b32 s{sT0}, s{sJob}, 6\ns_add_u32 s{sT0}, s{sT0}, {WS_G}")
    k("v_lshl_add_u32 v13, v7, 3, v6\nv_lshlrev_b32 v13, 2, v13\nv_mov_b32 v14, 0x7fffffff\nv_cmp_gt_u32 vcc, 2, v7\nv_cndmask_b32 v13, v14, v13, vcc")
    k(f"buffer_store_dword v12, v13, {s(sWS,4)}, s{sT0} offen")
    k(f"s_branch {done}")
    k.label(ln)
    loader_tail(k, 0)
    k(f"s_branch {done}")

def gen_k1(name="k1_kernel", prof=False, stop=None, rot="T2", code_pf=False):
    k = Kern(name, nv=256, na=0)
    P = Prof(k, prof, base=64)
    k(f"s_cmp_ge_u32 s2, 256\ns_cbranch_scc1 {name}_end")
    P.start()
    P.stamp()
    decode(k, rot)
    tA, tB = T("A"), T("B")
    k(f"s_and_b32 s4, s{sQ}, 1\ns_cmp_ge_u32 s{sW}, 4\ns_cbranch_scc1 {name}_loaders")
    k(f"s_cmp_eq_u32 s4, 0\ns_cbranch_scc1 {name}_cpA\ns_branch {name}_cpB")
    k.label(f"{name}_loaders")
    k(f"s_cmp_eq_u32 s4, 0\ns_cbranch_scc0 {name}_ldB")
    n0 = P.n
    for t in (tA, tB):
        P.n = n0
        gen_loader(k, t, name, P)
        if stop == "acc":
            loader_tail(k, 0)
            k(f"s_branch {name}_end"); continue
        k(f"s_cmp_eq_u32 s{sW}, 4\ns_cbranch_scc0 {name}_side")
        k("s_setprio 3")
        gen_helper_early(k, t)
        loader_tail(k, 4)
        P.stamp()
        gen_helper(k, t, name, P)
        k(f"s_branch {name}_fin")
    if stop != "acc":
        k.label(f"{name}_side")
        gen_side(k, name)
    for t in (tA, tB):
        P.n = n0
        gen_compute(k, t, name, P, stop)
    k.label(f"{name}_fin")
    if prof:
        P.n = 7
        k(f"s_load_dwordx2 s[4:5], s[0:1], {A_WS}\ns_waitcnt vmcnt(0) lgkmcnt(0)")
        srd(k, 8, 4, 0x4000000)
        P.stamp()
        P.flush(8, sW, 250, 62)
    k.label(f"{name}_end")
    k("s_endpgm")
    return k

if __name__ == "__main__":
    import sys
    sys.path.insert(0, "exp")
    from build import build
    for tag, kw in (("acc", dict(stop="acc")), ("full", dict()), ("prof", dict(prof=True))):
        k = gen_k1(**kw)
        open(f"k1_{tag}.s", "w").write(module([f"@launch kernel={k.name} grid=(256,1,1) block=(512,1,1) lds={LDS_K1}"], [k]))
        build(f"k1_{tag}.s", f"k1_{tag}.co", k.name, check=(tag == "full"))
        print(tag, "built, pads:", k.npad, "lines:", len(k.lines))
```

```python
from ag import *
from layout import *

def srd(k, r, lo, size):
    k(f"s_mov_b32 s{r}, s{lo}\ns_and_b32 s{r+1}, s{lo+1}, 0xffff\ns_mov_b32 s{r+2}, {size}\ns_mov_b32 s{r+3}, 0x20000")

def dump(k, regs, sOUT, name):
    k("s_lshl_b32 s61, s2, 14\nv_lshlrev_b32 v127, 6, v87")
    k("s_waitcnt vmcnt(0) lgkmcnt(0)\ns_nop 7")
    for i, r in enumerate(regs): k(f"buffer_store_dword v{r}, v127, {s(sOUT,4)}, s61 offen offset:{4*i}")
    k(f"s_waitcnt vmcnt(0)\ns_branch {name}_end")

PROF_OFF = 0x1180000
class Prof:
    def __init__(self, k, on, base=64): self.k, self.on, self.n, self.base = k, on, 0, base
    def start(self):
        if self.on: self.k("s_memrealtime s[96:97]")
    def stamp(self):
        if not self.on: return
        r = self.base + 2*self.n; self.n += 1
        self.k(f"s_memtime s[{r}:{r+1}]")
    def flush(self, sWS, sW, tmpv, tmps):
        if not self.on: return
        k = self.k
        k("s_waitcnt lgkmcnt(0)")
        k(f"s_lshl_b32 s{tmps}, s2, 3\ns_add_u32 s{tmps}, s{tmps}, s{sW}\ns_lshl_b32 s{tmps}, s{tmps}, 6\ns_add_u32 s{tmps}, s{tmps}, {PROF_OFF}")
        k(f"s_memrealtime s[{self.base + 2*self.n}:{self.base + 2*self.n + 1}]\ns_waitcnt lgkmcnt(0)")
        k(f"v_mov_b32 v{tmpv+1}, 0")
        for i in range(self.n + 1):
            k(f"v_mov_b32 v{tmpv}, s{self.base + 2*i}\nbuffer_store_dword v{tmpv}, v{tmpv+1}, {s(sWS,4)}, s{tmps} offen offset:{4*i}")
        k(f"v_mov_b32 v{tmpv}, s96\nbuffer_store_dword v{tmpv}, v{tmpv+1}, {s(sWS,4)}, s{tmps} offen offset:60")

def gen_k3(name="k3_kernel", ND=3, rot=True, prof=False, stop=None):
    k = Kern(name, nv=128, na=ND*36)
    sWS, sOUT, sX, sDS, sDBG = 8, 12, 16, 20, 24
    sW, sB, sJ, sH, sRho = 26, 27, 28, 29, 30
    sS, sC = 32, 36
    sO, sF = 44, 48
    sK, sT0, sT1, sT2 = 56, 57, 58, 59
    ACC = 0
    vL16, vK0, vK1, vLane, vN, vG4 = 80, 81, 82, 83, 84, 85
    vG = 88
    vT = 92
    def buf(i, f): return a((i % ND)*36 + f*4, 4)

    P = Prof(k, prof)
    k(f"s_cmp_ge_u32 s2, 256\ns_cbranch_scc1 {name}_end")
    P.start()
    P.stamp()
    k(f"s_load_dwordx2 s[4:5], s[0:1], {A_WS}\ns_load_dwordx2 s[6:7], s[0:1], {A_OUT}")
    k(f"s_load_dwordx2 s[40:41], s[0:1], {A_X}\ns_load_dwordx2 s[42:43], s[0:1], {A_DSKIP}\ns_load_dwordx2 s[{sDBG}:{sDBG+1}], s[0:1], {A_DBG}")
    k(f"v_lshrrev_b32 v{vT}, 6, v0\nv_and_b32 v{vLane}, 63, v0\nv_mov_b32 v87, v0")
    k(f"v_readfirstlane_b32 s{sW}, v{vT}")
    k(f"v_lshlrev_b32 v{vL16}, 4, v{vLane}\nv_and_b32 v{vN}, 15, v{vLane}\nv_lshrrev_b32 v{vG4}, 4, v{vLane}")
    k(f"s_and_b32 s{sRho}, s2, 7\ns_lshr_b32 s{sT0}, s2, 3\ns_lshr_b32 s{sT1}, s{sT0}, 3\ns_and_b32 s{sJ}, s{sT0}, 7")
    k(f"s_lshl_b32 s{sB}, s{sRho}, 2\ns_add_u32 s{sB}, s{sB}, s{sT1}")
    k(f"s_lshl_b32 s{sH}, s{sT1}, 3\ns_add_u32 s{sH}, s{sH}, s{sJ}")
    k("s_waitcnt lgkmcnt(0)")
    srd(k, sWS, 4, WS_SIZE); srd(k, sOUT, 6, 5242880); srd(k, sX, 40, 2621440); srd(k, sDS, 42, 1280)
    k(f"s_mul_i32 s{sT0}, s{sB}, {4*40960}")
    for tj in range(4): k(f"s_add_u32 s{sS+tj}, s{sT0}, {WS_S + tj*40960}")
    k(f"s_mul_i32 s{sT0}, s{sJ}, {5*40960}")
    for nt in range(5): k(f"s_add_u32 s{sC+nt}, s{sT0}, {WS_CF + nt*40960}")
    k(f"s_mul_i32 s{sT0}, s{sB}, {4*20480}")
    for tj in range(4): k(f"s_add_u32 s{sO+tj}, s{sT0}, {WS_O + tj*20480}")
    k(f"s_mul_i32 s{sT0}, s{sJ}, {5*20480}")
    for nt in range(5): k(f"s_add_u32 s{sF+nt}, s{sT0}, {WS_WF + nt*20480}")

    KV = vT
    PQ = 0
    k(f"v_lshlrev_b32 v{vK0}, 3, v0")
    k(f"v_mov_b32 v{vK1}, 0x7fffffff\nv_cmp_gt_u32 vcc, 210, v0\nv_cndmask_b32 v{vK0}, v{vK1}, v{vK0}, vcc")
    k(f"s_lshl_b32 s{sT0}, s{sH}, 15\ns_add_u32 s{sT0}, s{sT0}, {WS_KVP}")
    for c in range(16):
        k(f"s_add_u32 s{sT1 + (c&1)}, s{sT0}, {c*2048}")
        k(f"buffer_load_dwordx2 {v(KV+2*c,2)}, v{vK0}, {s(sWS,4)}, s{sT1 + (c&1)} offen")
    k(f"s_lshl_b32 s{sT0}, s{sH}, 5\ns_lshl_b32 s{sT1}, s{sRho}, 2\ns_add_u32 s{sT0}, s{sT0}, s{sT1}\ns_add_u32 s{sT0}, s{sT0}, s{sW}")
    k(f"s_mul_i32 s{sT0}, s{sT0}, 5120\ns_add_u32 s{sT0}, s{sT0}, {WS_PQ}")
    for m in range(5):
        k(f"buffer_load_dwordx4 {v(PQ+4*m,4)}, v{vL16}, {s(sWS,4)}, s{sT0} offen offset:{m*1024 if m < 4 else 0}" if m < 4 else
          f"s_add_u32 s{sT1}, s{sT0}, 4096\nbuffer_load_dwordx4 {v(PQ+4*m,4)}, v{vL16}, {s(sWS,4)}, s{sT1} offen")
    vGo = 86
    k(f"s_lshl_b32 s{sT0}, s{sRho}, 10\ns_lshl_b32 s{sT1}, s{sW}, 8\ns_add_u32 s{sT0}, s{sT0}, s{sT1}\ns_add_u32 s{sT0}, s{sT0}, {WS_G}")
    k(f"v_lshlrev_b32 v{vK1}, 2, v{vLane}")
    k(f"buffer_load_dword v{vGo}, v{vK1}, {s(sWS,4)}, s{sT0} offen")
    k(f"s_lshl_b32 s{sT0}, s{sB}, 8\ns_add_u32 s{sT0}, s{sT0}, {WS_G}")
    k(f"v_lshlrev_b32 v{vK1}, 2, v{vN}")
    for tj in range(4): k(f"buffer_load_dword v{vG+tj}, v{vK1}, {s(sWS,4)}, s{sT0} offen offset:{tj*64}")
    n_ojob_tail = 5 + 1 + 4

    steps = [("S", i) for i in range(10)] + [("O", i) for i in range(5)]
    if rot:
        k(f"s_lshr_b32 s{sT0}, s2, 3\ns_and_b32 s{sT1}, s{sT0}, 1\ns_lshr_b32 s{sT0}, s{sT0}, 3\ns_xor_b32 s{sT0}, s{sT0}, s{sT1}\ns_and_b32 s{sT0}, s{sT0}, 1\ns_mul_i32 s{sT0}, s{sT0}, 5")
    else:
        k(f"s_mov_b32 s{sT0}, 0")
    k(f"s_lshl_b32 s{sT0}, s{sT0}, 2\ns_add_u32 s{sT0}, s{sT0}, s{sW}\ns_lshl_b32 s{sK}, s{sT0}, 10")
    sKlim = 60
    k(f"s_lshl_b32 s{sKlim}, s{sW}, 10\ns_add_u32 s{sKlim}, s{sKlim}, 40960")
    def issue(i):
        kind, n = steps[i]
        vK = vK0 if i % 2 == 0 else vK1
        if kind == "O" and n == 0:
            k(f"s_lshl_b32 s{sK}, s{sW}, 10")
        k(f"v_add_u32 v{vK}, s{sK}, v{vL16}")
        tb, wb, fl = (sS, sC, "") if kind == "S" else (sO, sF, " sc1")
        for f in range(4): k(f"buffer_load_dwordx4 {buf(i,f)}, v{vK}, {s(sWS,4)}, s{tb+f} offen{fl}")
        for f in range(5): k(f"buffer_load_dwordx4 {buf(i,4+f)}, v{vK}, {s(sWS,4)}, s{wb+f} offen")
        k(f"s_add_u32 s{sK}, s{sK}, 4096")
        if kind == "S":
            k(f"s_sub_u32 s{sT0}, s{sK}, 40960\ns_cmp_ge_u32 s{sK}, s{sKlim}\ns_cselect_b32 s{sK}, s{sT0}, s{sK}")
    for i in range(ND): issue(i)

    P.stamp()
    k(f"s_waitcnt vmcnt({ND*9 + n_ojob_tail})")
    A0, A1 = 124, 125
    for c in range(16):
        lo, hi = KV + 2*c, KV + 2*c + 1
        if c == 0:
            k(f"v_lshlrev_b32 v124, 16, v{lo}\nv_and_b32 v125, 0xffff0000, v{lo}\nv_lshlrev_b32 v126, 16, v{hi}\nv_and_b32 v127, 0xffff0000, v{hi}")
        else:
            k(f"v_lshlrev_b32 v{vK1}, 16, v{lo}\nv_and_b32 v{lo}, 0xffff0000, v{lo}\nv_add_f32 v124, v124, v{vK1}\nv_add_f32 v125, v125, v{lo}")
            k(f"v_lshlrev_b32 v{vK1}, 16, v{hi}\nv_and_b32 v{hi}, 0xffff0000, v{hi}\nv_add_f32 v126, v126, v{vK1}\nv_add_f32 v127, v127, v{hi}")
    k(f"v_cvt_pk_bf16_f32 v{KV}, v124, v125\nv_cvt_pk_bf16_f32 v{KV+1}, v126, v127")
    k(f"v_lshlrev_b32 v{vK1}, 3, v87")
    k(f"ds_write_b64 v{vK1}, {v(KV,2)}")
    k(f"v_mov_b32 v{KV+2}, 0\nv_mov_b32 v{KV+3}, 0\nv_mov_b32 v{KV+4}, 0\nv_mov_b32 v{KV+5}, 0\nv_mov_b32 v{KV+6}, 2048")
    k(f"ds_write_b128 v{KV+6}, {v(KV+2,4)}")
    k("s_waitcnt lgkmcnt(0)\ns_barrier")
    if stop == "kv":
        k(f"v_lshlrev_b32 v{vK1}, 3, v87\nds_read_b64 v[94:95], v{vK1}")
        dump(k, [92, 93, 94, 95, 124, 125, 126, 127 - 1, 0, 1, 4, 16, 86, 88], sOUT, name)
    vA, vAz = KV + 8, KV + 9
    k(f"v_lshrrev_b32 v{vK1}, 2, v{vN}\nv_and_b32 v{vA}, 3, v{vN}\nv_mul_u32_u24 v{vA}, 80, v{vA}")
    k(f"v_cmp_eq_u32 vcc, v{vK1}, v{vG4}")
    AOP = KV + 12
    NUM = 20
    k(f"v_mov_b32 v{vAz}, 2048")
    k.c("per read: addr = diag ? vA + off : 2048  (computed into a rotating temp)")
    order = [(i, m) for i in range(6) for m in range(5)]
    TA = KV + 10
    def rd(n):
        i, m = order[n]
        off = (320*i + 16*m) if i < 5 else (1600 + 16*m)
        t = TA + (n & 1)
        if i < 5: k(f"v_add_u32 v{t}, {off}, v{vA}")
        else: k(f"v_mov_b32 v{t}, {off}")
        k(f"v_cndmask_b32 v{t}, v{vAz}, v{t}, vcc")
        k(f"ds_read_b128 {v(AOP + 4*(n % 4), 4)}, v{t}")
    for n in range(3): rd(n)
    k(f"s_waitcnt vmcnt({ND*9 + 5})")
    for n in range(30):
        if n + 3 < 30: rd(n + 3)
        k(f"s_waitcnt lgkmcnt({min(3, 29 - n)})")
        i, m = order[n]
        src = "0" if m == 0 else v(NUM + 4*i, 4)
        k(f"v_mfma_f32_16x16x32_bf16 {v(NUM+4*i,4)}, {v(AOP + 4*(n % 4), 4)}, {v(PQ+4*m,4)}, {src}")
    if stop == "num":
        k("s_nop 7\ns_nop 7")
        dump(k, [20, 21, 22, 23, 24, 25, 36, 37, 38, 39, 40, 41, 42, 43, 0, 16], sOUT, name)
    P.stamp()
    k(f"s_waitcnt vmcnt({ND*9 + 4})")
    DEN = NUM + 20
    k(f"v_add_f32 v{DEN}, 0x358637bd, v{DEN}")
    k(f"v_rcp_f32 v{DEN}, v{DEN}")
    k(f"v_sub_f32 v{vGo}, 1.0, v{vGo}")
    k(f"v_mul_f32 v{DEN}, v{DEN}, v{vGo}")
    for d in range(20): k(f"v_mul_f32 v{NUM+d}, v{NUM+d}, v{DEN}")
    OP = 48
    for d in range(10): k(f"v_cvt_pk_bf16_f32 v{OP+d}, v{NUM+2*d}, v{NUM+2*d+1}")
    k(f"s_lshl_b32 s{sT0}, s{sRho}, 2\ns_add_u32 s{sT0}, s{sT0}, s{sW}\ns_mul_i32 s{sT0}, s{sT0}, {4*20480}")
    k(f"s_and_b32 s{sT1}, s{sH}, 3\ns_lshl_b32 s{sT1}, s{sT1}, 8\ns_add_u32 s{sT0}, s{sT0}, s{sT1}\ns_add_u32 s{sT0}, s{sT0}, {WS_O}")
    k(f"v_mul_u32_u24 v{vK1}, 20480, v{vG4}\nv_lshl_add_u32 v{vK1}, v{vN}, 4, v{vK1}")
    k(f"s_lshr_b32 s{sT1}, s{sH}, 2\ns_lshl_b32 s{sT2}, s{sT1}, 11\ns_add_u32 s{sT2}, s{sT2}, s{sT0}")
    k(f"buffer_store_dwordx4 {v(OP,4)}, v{vK1}, {s(sWS,4)}, s{sT2} offen sc1")
    k(f"buffer_store_dwordx4 {v(OP+4,4)}, v{vK1}, {s(sWS,4)}, s{sT2} offen offset:1024 sc1")
    k(f"s_and_b32 s{sT2}, s{sT1}, 1\ns_lshl_b32 s{sT2}, s{sT2}, 3\ns_lshr_b32 s{sT1}, s{sT1}, 1\ns_add_u32 s{sT1}, s{sT1}, 16\ns_lshl_b32 s{sT1}, s{sT1}, 10")
    k(f"s_add_u32 s{sT2}, s{sT2}, s{sT1}\ns_add_u32 s{sT2}, s{sT2}, s{sT0}")
    k(f"buffer_store_dwordx2 {v(OP+8,2)}, v{vK1}, {s(sWS,4)}, s{sT2} offen sc1")
    k("s_waitcnt vmcnt(0)\ns_barrier")
    lab = k.newlabel("sig")
    k(f"s_cmp_lg_u32 s{sW}, 0\ns_cbranch_scc1 {lab}")
    k(f"s_lshl_b32 s{sT0}, s{sRho}, 2\nv_mov_b32 v{vK1}, s{sT0}\nv_mov_b32 v{vT}, 1")
    k(f"s_mov_b64 s[62:63], exec\ns_mov_b64 exec, 1")
    k(f"global_atomic_add v{vK1}, v{vT}, {s(sDBG,2)} sc1")
    k("s_mov_b64 exec, s[62:63]")
    k.label(lab)
    P.stamp()
    for r in range(80): k(f"v_mov_b32 v{ACC+r}, 0")
    outstanding_after = lambda i: min(len(steps) - 1 - i, ND - 1) * 9
    for i in range(len(steps)):
        kind, n = steps[i]
        if kind == "O" and n == 0:
            P.stamp()
            for tj in range(4):
                for nt in range(5):
                    for r in range(4): k(f"v_mul_f32 v{ACC+(tj*5+nt)*4+r}, v{vG+tj}, v{ACC+(tj*5+nt)*4+r}")
        if i >= ND or True:
            k(f"s_waitcnt vmcnt({outstanding_after(i)})")
        for tj in range(4):
            for nt in range(5):
                d = v(ACC + (tj*5+nt)*4, 4)
                k(f"v_mfma_f32_16x16x32_bf16 {d}, {buf(i,4+nt)}, {buf(i,tj)}, {d}")
        j = i + ND
        if j < len(steps):
            if steps[j][0] == "O" and steps[j][1] == 0:
                l1, l2 = k.newlabel("poll"), k.newlabel("polled")
                k(f"s_cmp_lg_u32 s{sW}, 0\ns_cbranch_scc1 {l2}")
                k(f"s_lshl_b32 s{sT0}, s{sRho}, 2\nv_mov_b32 v{vT}, s{sT0}")
                k.label(l1)
                k(f"global_load_dword v{vT+1}, v{vT}, {s(sDBG,2)} sc1\ns_waitcnt vmcnt(0)\nv_readfirstlane_b32 s{sT1}, v{vT+1}")
                k(f"s_cmp_ge_u32 s{sT1}, 32\ns_cbranch_scc1 {l2}\ns_sleep 2\ns_branch {l1}")
                k.label(l2)
                k("s_barrier")
            issue(j)
    P.stamp()
    XV, DV = vT, vT + 10
    k(f"s_lshl_b32 s{sT0}, s{sB}, 6\ns_lshl_b32 s{sT1}, s{sW}, 4\ns_add_u32 s{sT0}, s{sT0}, s{sT1}\ns_mul_i32 s{sT0}, s{sT0}, 1280\ns_mul_i32 s{sT1}, s{sJ}, 160\ns_add_u32 s{sT0}, s{sT0}, s{sT1}")
    k(f"v_mul_u32_u24 v{vK0}, 1280, v{vN}\nv_lshl_add_u32 v{vK0}, v{vG4}, 3, v{vK0}\nv_lshlrev_b32 v{vK1}, 3, v{vG4}")
    for nt in range(5): k(f"buffer_load_dwordx2 {v(XV+2*nt,2)}, v{vK0}, {s(sX,4)}, s{sT0} offen offset:{nt*32}")
    for nt in range(5): k(f"buffer_load_dwordx2 {v(DV+2*nt,2)}, v{vK1}, {s(sDS,4)}, s{sT1} offen offset:{nt*32}")
    vR = vT + 20
    k(f"s_mul_i32 s{sT2}, s{sW}, 20480\nv_add_u32 v{vR}, s{sT2}, v{vL16}")
    k("s_barrier")
    for t in range(20): k(f"ds_write_b128 v{vR}, {v(ACC+4*t,4)} offset:{t*1024}")
    k("s_waitcnt lgkmcnt(0)\ns_barrier")
    k(f"s_mul_i32 s{sT2}, s{sW}, 5120\nv_add_u32 v{vR}, s{sT2}, v{vL16}\nv_add_u32 v{vR+1}, 40960, v{vR}")
    for u in range(4):
        for nt in range(5):
            k(f"ds_read_b128 {v(ACC+(u*5+nt)*4,4)}, v{vR + (u >> 1)} offset:{(u & 1)*20480 + nt*1024}")
    k(f"s_cmp_eq_u32 s{sW}, 1\ns_cselect_b32 s{sT2}, 1, 0")
    vGw = vR + 2
    k(f"v_mov_b32 v{vGw}, v{vG}")
    for tj in range(1, 4):
        k(f"s_cmp_eq_u32 s{sW}, {tj}\ns_cselect_b64 vcc, -1, 0\nv_cndmask_b32 v{vGw}, v{vGw}, v{vG+tj}, vcc")
    k("s_waitcnt vmcnt(0) lgkmcnt(0)")
    vO = vR + 3
    k(f"s_lshl_b32 s{sT0}, s{sB}, 6\ns_lshl_b32 s{sT1}, s{sW}, 4\ns_add_u32 s{sT0}, s{sT0}, s{sT1}\ns_mul_i32 s{sT0}, s{sT0}, 2560\ns_mul_i32 s{sT1}, s{sJ}, 320\ns_add_u32 s{sT0}, s{sT0}, s{sT1}")
    k(f"v_mul_u32_u24 v{vO}, 2560, v{vN}\nv_lshl_add_u32 v{vO}, v{vG4}, 4, v{vO}")
    T = vR + 4
    for nt in range(5):
        for r in range(4):
            d = ACC + nt*4 + r
            k(f"v_add_f32 v{d}, v{d}, v{d+20}\nv_add_f32 v{d+40}, v{d+40}, v{d+60}")
        for r in range(4):
            xr, dr = XV + 2*nt + (r >> 1), DV + 2*nt + (r >> 1)
            if r & 1: k(f"v_and_b32 v{T}, 0xffff0000, v{xr}\nv_and_b32 v{T+1}, 0xffff0000, v{dr}")
            else: k(f"v_lshlrev_b32 v{T}, 16, v{xr}\nv_lshlrev_b32 v{T+1}, 16, v{dr}")
            d = ACC + nt*4 + r
            k(f"v_mul_f32 v{T}, v{T}, v{T+1}\nv_add_f32 v{d}, v{d}, v{d+40}\nv_fmac_f32 v{d}, v{vGw}, v{T}")
        k(f"buffer_store_dwordx4 {v(ACC+nt*4,4)}, v{vO}, {s(sOUT,4)}, s{sT0} offen offset:{nt*64}")
    P.stamp()
    k("s_waitcnt vmcnt(0)") if prof else None
    P.stamp()
    P.flush(sWS, sW, vT, sT0)
    k.label(f"{name}_end")
    k("s_endpgm")
    return k

if __name__ == "__main__":
    import sys
    sys.path.insert(0, "exp")
    from build import build
    for tag, kw in (("p3", dict(ND=3)), ("p4", dict(ND=4)), ("p2", dict(ND=2)), ("p3nr", dict(ND=3, rot=False))):
        k = gen_k3(prof=True, **kw)
        open(f"k3_{tag}.s", "w").write(module([f"@launch kernel={k.name} grid=(256,1,1) block=(256,1,1) lds=81920"], [k]))
        build(f"k3_{tag}.s", f"k3_{tag}.co", k.name, check=False)
    k = gen_k3()
    open("k3.s", "w").write(module([f"@launch kernel={k.name} grid=(256,1,1) block=(256,1,1) lds=81920"], [k]))
    build("k3.s", "k3.co", k.name)
    print("built, pads:", k.npad, "lines:", len(k.lines))
```

```python
import sys
sys.path.insert(0, "gen"); sys.path.insert(0, "exp")
from ag import *
import k1, k3
from build import build
def make(path, order):
    a = k1.gen_k1(name="hh_in_kernel"); b = k3.gen_k3(name="hh_out_kernel")
    e = Kern("hh_nop_kernel", nv=8, ns=16); e("s_endpgm")
    L = {"a": f"@launch kernel={a.name} grid=(256,1,1) block=(512,1,1) lds={k1.LDS_K1}",
         "b": f"@launch kernel={b.name} grid=(256,1,1) block=(256,1,1) lds=81920",
         "e": f"@launch kernel={e.name} grid=(256,1,1) block=(64,1,1) lds=0"}
    ks = [a, b] + ([e] if "e" in order else [])
    open(path, "w").write(module([L[c] for c in order], ks))
    build(path, path.replace(".s", ".co"), a.name)
for o in ("ab", "abe", "abeeee", "eab", "abb", "aab"):
    make(f"cal_{o}.s", o)
```

```python
import re

def v(i, n=1): return f"v{i}" if n == 1 else f"v[{i}:{i+n-1}]"
def a(i, n=1): return f"a{i}" if n == 1 else f"a[{i}:{i+n-1}]"
def s(i, n=1): return f"s{i}" if n == 1 else f"s[{i}:{i+n-1}]"

_REG = re.compile(r"(?<![\w.])(-?\|?)([vas])(?:(\d+)|\[(\d+):(\d+)\])")
def regs_of(op):
    op = op.strip()
    out = set()
    for m in _REG.finditer(op):
        f = m.group(2)
        if m.group(3) is not None: out.add((f, int(m.group(3))))
        else:
            for r in range(int(m.group(4)), int(m.group(5)) + 1): out.add((f, r))
    if re.search(r"\bvcc\b", op): out.add(("s", "vcc"))
    if re.search(r"\bexec\b", op): out.add(("s", "exec"))
    if re.search(r"\bm0\b", op): out.add(("s", "m0"))
    return out

def split_ops(rest):
    ops, depth, cur = [], 0, ""
    for ch in rest:
        if ch in "[(": depth += 1
        if ch in "])": depth -= 1
        if ch == "," and depth == 0: ops.append(cur.strip()); cur = ""
        else: cur += ch
    if cur.strip(): ops.append(cur.strip())
    return ops

TRANS = ("v_exp_f32", "v_log_f32", "v_rcp_f32", "v_rsq_f32", "v_sqrt_f32", "v_sin_f32", "v_cos_f32", "v_rcp_iflag_f32")
class Ins:
    def __init__(self, text):
        self.text = text
        t = text.split(";")[0].strip()
        self.is_label = t.endswith(":")
        self.mn = t.split()[0] if t and not self.is_label else ""
        rest = t[len(self.mn):].strip() if self.mn else ""
        self.ops = split_ops(rest)
        mn = self.mn
        self.valu = mn.startswith("v_") and not mn.startswith("v_mfma")
        self.mfma = mn.startswith("v_mfma")
        self.vmem = mn.startswith(("buffer_", "global_", "flat_"))
        self.ds = mn.startswith("ds_")
        self.salu = mn.startswith("s_")
        self.trans = any(mn.startswith(x) for x in TRANS)
        self.dpp = ("_dpp" in mn) or (" row_" in t) or ("quad_perm" in t)
        self.permlane = mn.startswith("v_permlane")
        self.readlane = mn.startswith(("v_readlane", "v_readfirstlane"))
        self.passes = 0
        if self.mfma: self.passes = 8 if "32x32" in mn else 4
        self.defs, self.uses = set(), set()
        ops = self.ops
        if self.is_label or not mn: return
        def first_word(o): return o
        if self.mfma:
            self.defs = regs_of(ops[0]); self.srcA = regs_of(ops[1]); self.srcB = regs_of(ops[2]); self.srcC = regs_of(ops[3])
            self.uses = self.srcA | self.srcB | self.srcC
        elif self.valu:
            self.defs = regs_of(ops[0])
            nd = 1
            if mn.startswith(("v_add_co", "v_sub_co", "v_addc_co", "v_subb_co", "v_subrev_co", "v_div_scale", "v_mad_u64")): self.defs |= regs_of(ops[1]); nd = 2
            for o in ops[nd:]: self.uses |= regs_of(o)
            if mn.startswith(("v_fmac", "v_mac", "v_dot2c", "v_writelane")) or self.permlane: self.uses |= regs_of(ops[0])
            if mn.startswith("v_permlane") and "swap" in mn: self.defs |= regs_of(ops[1])
            if mn.startswith("v_cmpx"): self.defs.add(("s", "exec"))
            if mn.startswith("v_cndmask") and len(ops) == 3: self.uses.add(("s", "vcc"))
            if mn.startswith(("v_addc_co", "v_subb_co")): pass
        elif self.vmem:
            isload = "load" in mn
            lds = t.endswith(" lds") or " lds " in t or "_lds_" in mn
            atom = "atomic" in mn
            self.lds_dma = lds
            if mn.startswith(("buffer_inv", "buffer_wbl2")): return
            if isload and not lds:
                self.defs = regs_of(ops[0])
                for o in ops[1:]: self.uses |= regs_of(o)
                if "d16" in mn: self.uses |= regs_of(ops[0])
            elif atom and (" sc0" in t):
                self.defs = regs_of(ops[0])
                for o in ops[1:]: self.uses |= regs_of(o)
                if mn.startswith("buffer"): self.uses |= regs_of(ops[0])
            else:
                for o in ops: self.uses |= regs_of(o)
                if lds: self.uses.add(("s", "m0"))
            self.wide_store = ("store" in mn)
            self.store_data = set()
            if "store" in mn:
                self.store_data = {r for o in ops for r in regs_of(o) if r[0] in "va"}
        elif self.ds:
            if mn.startswith(("ds_read", "ds_bpermute", "ds_permute", "ds_swizzle")) or "_rtn" in mn:
                self.defs = regs_of(ops[0])
                for o in ops[1:]: self.uses |= regs_of(o)
            else:
                for o in ops: self.uses |= regs_of(o)
        elif self.salu:
            if mn.startswith(("s_cmp", "s_cbranch", "s_branch", "s_waitcnt", "s_barrier", "s_nop", "s_endpgm", "s_sleep", "s_setprio", "s_bitcmp")):
                for o in ops: self.uses |= regs_of(o)
            else:
                self.defs = regs_of(ops[0]) if ops else set()
                for o in ops[1:]: self.uses |= regs_of(o)
                if "saveexec" in mn: self.defs.add(("s", "exec")); self.uses.add(("s", "exec"))
    def states(self):
        if self.mn == "s_nop": return int(self.ops[0], 0) + 1
        return 1

def isv(r): return r[0] in "va"
def need(p, c):
    n = 0
    pv = {r for r in p.defs if isv(r)}; ps = {r for r in p.defs if r[0] == "s"}
    if p.valu:
        if c.mfma and (pv & c.uses): n = max(n, 2)
        if c.mfma and ("s", "exec") in ps: n = max(n, 4)
        if c.valu and p.trans and (pv & c.uses): n = max(n, 1)
        if c.mfma and p.trans and (pv & c.uses): n = max(n, 2)
        if (c.vmem or c.ds) and p.trans and (pv & c.uses): n = max(n, 1)
        if c.readlane and (pv & c.uses): n = max(n, 1)
        if c.permlane and (pv & c.uses): n = max(n, 2)
        if c.valu and c.dpp and (pv & c.uses): n = max(n, 2)
        if c.vmem and (ps & c.uses): n = max(n, 5)
        if c.valu and (ps & c.uses): n = max(n, 4 if c.readlane or c.mn.startswith("v_writelane") else 2)
        if c.salu and (ps & c.uses): n = max(n, 4 if ("s","exec") not in ps else 5)
        if c.valu and c.dpp and ("s", "exec") in ps: n = max(n, 5)
    if p.mfma:
        k = {4: 8, 8: 12}[p.passes]
        if c.mfma:
            if p.defs & (c.srcA | c.srcB): n = max(n, k)
            if p.defs & c.srcC and not (p.defs == c.srcC and p.mn == c.mn): n = max(n, k - 2)
            if (p.defs & c.defs) and not (p.defs == c.defs and p.mn == c.mn): n = max(n, k)
        elif c.valu or c.vmem or c.ds:
            if p.defs & (c.uses | c.defs): n = max(n, k)
        if c.valu and (p.srcC & c.defs): n = max(n, {4: 3, 8: 7}[p.passes])
    if p.vmem and getattr(p, "wide_store", False):
        if (c.valu or c.mfma) and (p.store_data & c.defs): n = max(n, 2)
        elif (c.vmem or c.ds) and (p.store_data & c.defs): n = max(n, 1)
    if p.salu and ("s", "m0") in p.defs:
        if (c.vmem and getattr(c, "lds_dma", False)): n = max(n, 1)
    if p.salu and ("s", "exec") in p.defs and c.valu and c.dpp: n = max(n, 0)
    return n

class Kern:
    def __init__(self, name, nv=256, na=0, ns=102, wgsize=256):
        self.name = name; self.lines = []; self.nv = nv; self.na = na; self.ns = ns; self.uid = 0
    def __call__(self, line):
        for l in line.split("\n"):
            l = l.strip()
            if l: self.lines.append(l)
    def c(self, txt): self.lines.append("; " + txt)
    def label(self, l): self.lines.append(l + ":")
    def newlabel(self, p="L"):
        self.uid += 1; return f"{self.name}_{p}{self.uid}"
    def padded(self):
        out = []; hist = []
        npad = 0
        ins_list = []
        for l in self.lines:
            if l.startswith(";") or l.startswith("."):
                out.append(l); continue
            c = Ins(l)
            if c.is_label:
                out.append(l); ins_list.append(c); continue
            req = 0; dist = 0
            for p in reversed(hist):
                r = need(p, c) - dist
                if r > req: req = r
                dist += p.states()
                if dist >= 20: break
            if req > 0:
                while req > 0:
                    k = min(req, 16)
                    nop = Ins(f"s_nop {k-1}"); out.append(nop.text); hist.append(nop); ins_list.append(nop); req -= k; npad += 1
            out.append(l); hist.append(c); ins_list.append(c)
            if len(hist) > 40: hist = hist[-24:]
        self.npad = npad
        self.check_backedges(ins_list)
        pend = {}
        for i in ins_list:
            if i.is_label: continue
            if i.mn.startswith(("s_load", "s_mem")):
                for r in i.defs: pend[r] = i.text
                continue
            if i.mn == "s_waitcnt" and "lgkmcnt(0)" in i.text: pend = {}; continue
            if i.mn in ("s_branch", "s_endpgm"): pend = {}; continue
            hit = (i.defs | i.uses) & set(pend)
            if hit and not i.text.startswith("s_memtime"): print(f"[scalar load in flight] {i.text} touches {hit} pending from {pend[list(hit)[0]]}")
        return out
    def check_backedges(self, L):
        pos = {i.text[:-1]: n for n, i in enumerate(L) if i.is_label}
        for n, i in enumerate(L):
            if i.mn.startswith(("s_cbranch", "s_branch")):
                t = pos.get(i.ops[0])
                if t is None: continue
                tail = [x for x in L[max(0, n-24):n+1] if not x.is_label]
                head = [x for x in L[t:t+24] if not x.is_label]
                for hi, c in enumerate(head):
                    dist = sum(x.states() for x in head[:hi])
                    for p in reversed(tail):
                        if need(p, c) > dist:
                            print(f"[hazard across branch to {i.ops[0]}] {p.text}  ->  {c.text} (dist {dist}, need {need(p,c)})")
                        dist += p.states()
                        if dist >= 20: break
    def text(self):
        body = self.padded()
        out = [f".globl {self.name}", ".p2align 8", f".type {self.name},@function", f"{self.name}:"]
        for l in body:
            out.append(l if (l.endswith(":") or l.startswith(".")) else "    " + l)
        return "\n".join(out) + "\n"
    def desc(self):
        acc = (self.nv + 3) // 4 * 4
        tot = acc + self.na if self.na else self.nv
        o = [f".amdhsa_kernel {self.name}", f"  .amdhsa_next_free_vgpr {tot}", f"  .amdhsa_next_free_sgpr {self.ns}",
             f"  .amdhsa_accum_offset {acc}", "  .amdhsa_group_segment_fixed_size 0", "  .amdhsa_kernarg_size 136",
             "  .amdhsa_user_sgpr_count 2", "  .amdhsa_user_sgpr_kernarg_segment_ptr 1", "  .amdhsa_system_sgpr_workgroup_id_x 1",
             "  .amdhsa_float_denorm_mode_32 3", "  .amdhsa_float_denorm_mode_16_64 3", ".end_amdhsa_kernel"]
        return "\n".join(o) + "\n"

def module(header_lines, kerns):
    t = "".join("; " + h + "\n" for h in header_lines)
    t += '.amdgcn_target "amdgcn-amd-amdhsa--gfx950"\n.text\n'
    for k in kerns: t += k.text()
    t += '.section .rodata,"a"\n'
    for k in kerns: t += ".p2align 6\n" + k.desc()
    return t
```

```python
from ag import *
from layout import *
from k3 import srd, Prof, lds_wait

STAGE = 44032
WT = ""
CODE_PF, NEXT = False, None
BPRIO = 0
XFIRST = False
DMAF = {}
XMAP = "8x4"
NBAR = 3
FUSED = None
XOFF = 0
L_WPHI, L_ZERO, L_ETAB, L_CTAB, L_CNT, L_COEF = 132096, 135296, 136064, 144256, 152448, 152576
L_L8T = 161792
L_LAMT = 162304
L_KVO = 83968
L_CIN, L_LPT = 153088, 153600
LDS_K1 = 163840
LOG2E = 0x3fb8aa3b
INV2PI = 0x3e22f983

class T:
    def __init__(self, typ):
        self.typ = typ
        if typ == "A":
            self.nT, self.nP, self.p0 = 10, 1, 0
            self.secs = [(1, 16384), (2, 27648)]
            self.wsoff = 38912
        else:
            self.nT, self.nP, self.p0 = 5, 4, 1
            self.secs = [(0, 16384)]
            self.wsoff = 27648
        self.nS = 2*self.nP
        self.ntile = self.nT + self.nS

sW, sC, sHG, sQ = 3, 26, 27, 28
def decode(k, rot="T2"):
    k(f"s_load_dwordx2 s[24:25], s[0:1], {A_X}\ns_load_dwordx4 s[20:23], s[0:1], {A_BRE}\ns_load_dwordx2 s[18:19], s[0:1], {A_WQKV}")
    k("v_lshrrev_b32 v1, 6, v0\ns_nop 0\nv_readfirstlane_b32 s3, v1")
    k("s_and_b32 s4, s2, 7\ns_lshr_b32 s5, s2, 3")
    if XMAP == "8x4":
        k(f"s_and_b32 s6, s4, 1\ns_lshl_b32 s6, s6, 3\ns_and_b32 s7, s5, 7\ns_add_u32 s{sC}, s6, s7")
        k(f"s_lshr_b32 s6, s4, 1\ns_lshl_b32 s6, s6, 2\ns_lshr_b32 s29, s5, 3\ns_add_u32 s{sQ}, s6, s29")
    elif XMAP == "4x8":
        k(f"s_and_b32 s6, s4, 3\ns_lshl_b32 s6, s6, 2\ns_and_b32 s7, s5, 3\ns_add_u32 s{sC}, s6, s7")
        k(f"s_lshr_b32 s6, s4, 2\ns_lshl_b32 s6, s6, 3\ns_lshr_b32 s29, s5, 2\ns_add_u32 s{sQ}, s6, s29")
    else:
        k(f"s_and_b32 s7, s5, 15\ns_mov_b32 s{sC}, s7")
        k(f"s_lshl_b32 s6, s4, 1\ns_lshr_b32 s29, s5, 4\ns_add_u32 s{sQ}, s6, s29")
    k(f"s_lshr_b32 s{sHG}, s{sQ}, 1")
    if rot == "T2": k("s_xor_b32 s30, s7, s29\ns_and_b32 s30, s30, 1\ns_mul_i32 s30, s30, 5")
    elif rot == "T4": k("s_add_u32 s30, s7, s29\ns_and_b32 s30, s30, 3\ns_mul_i32 s30, s30, 5\ns_lshr_b32 s30, s30, 1")
    elif rot == "T5":
        k("s_add_u32 s30, s7, s29\ns_mul_i32 s6, s30, 52\ns_lshr_b32 s6, s6, 8\ns_mul_i32 s6, s6, 5\ns_sub_u32 s30, s30, s6\ns_lshl_b32 s30, s30, 1")
    elif rot == "T3":
        k("s_add_u32 s30, s7, s29\ns_mul_i32 s6, s30, 86\ns_lshr_b32 s6, s6, 8\ns_mul_i32 s6, s6, 3\ns_sub_u32 s30, s30, s6\ns_mul_i32 s30, s30, 3")
    elif rot == "A":
        k("s_mul_i32 s30, s7, 5\ns_mul_i32 s6, s29, 10\ns_add_u32 s30, s30, s6\ns_lshr_b32 s30, s30, 2")
        for _ in range(2): k("s_sub_u32 s6, s30, 10\ns_cmp_ge_u32 s30, 10\ns_cselect_b32 s30, s6, s30")
    else: k("s_mov_b32 s30, 0")
sROT = 30

def lam_calc(k, lre, lim, ldt, lr, li, t0, t1):
    k(f"v_mul_f32 v{t0}, {LOG2E:#x}, v{ldt}\nv_exp_f32 v{t0}, v{t0}")
    k(f"v_cvt_pk_bf16_f32 v{t0}, v{t0}, v{t0}\nv_lshlrev_b32 v{t0}, 16, v{t0}")
    k(f"v_mul_f32 v{t1}, v{t0}, v{lim}\nv_mul_f32 v{t0}, v{t0}, v{lre}")
    k(f"v_mul_f32 v{t0}, {LOG2E:#x}, v{t0}\nv_exp_f32 v{t0}, v{t0}")
    k(f"v_mul_f32 v{t1}, {INV2PI:#x}, v{t1}\nv_rndne_f32 v{lr}, v{t1}\nv_sub_f32 v{t1}, v{t1}, v{lr}")
    k(f"v_cos_f32 v{lr}, v{t1}\nv_sin_f32 v{li}, v{t1}")
    k(f"v_mul_f32 v{lr}, v{lr}, v{t0}\nv_mul_f32 v{li}, v{li}, v{t0}")

def csquare(k, r, i, t):
    k(f"v_mul_f32 v{t}, v{i}, v{i}\nv_mul_f32 v{i}, v{r}, v{i}\nv_fma_f32 v{r}, v{r}, v{r}, -v{t}\nv_add_f32 v{i}, v{i}, v{i}")

def load_lam_inputs(k, voff, d0, d1, d2, sA, sB, sC_):
    k(f"buffer_load_ushort v{d0}, v{voff}, {s(sA,4)}, 0 offen\nbuffer_load_ushort v{d1}, v{voff}, {s(sB,4)}, 0 offen\nbuffer_load_ushort v{d2}, v{voff}, {s(sC_,4)}, 0 offen")

def lds_signal(k, addr_v, one_v):
    k("s_mov_b64 s[60:61], exec\ns_mov_b64 exec, 1")
    k(f"ds_add_u32 v{addr_v}, v{one_v}")
    k("s_mov_b64 exec, s[60:61]")

def code_prefetch(k, first, last, fwd, vtmp, stmp, lane_v):
    lp, ls = k.newlabel("pc"), k.newlabel("nopf")
    k(f"s_getpc_b64 s[{stmp}:{stmp+1}]")
    k.label(lp)
    if fwd: k(f"s_add_u32 s{stmp}, s{stmp}, {first}-{lp}\ns_addc_u32 s{stmp+1}, s{stmp+1}, 0")
    else: k(f"s_sub_u32 s{stmp}, s{stmp}, {lp}-{first}\ns_subb_u32 s{stmp+1}, s{stmp+1}, 0")
    k(f"s_lshr_b32 s{stmp+2}, s2, 3\ns_lshl_b32 s{stmp+2}, s{stmp+2}, 13")
    k(f"v_lshlrev_b32 v{vtmp}, 7, v{lane_v}\nv_add_u32 v{vtmp}, s{stmp+2}, v{vtmp}")
    k(f"s_mov_b32 s{stmp+3}, {last}-{first}\nv_cmp_gt_u32 vcc, s{stmp+3}, v{vtmp}")
    k(f"v_mov_b32 v{vtmp+1}, s{stmp+1}\nv_add_co_u32 v{vtmp}, s[{stmp+4}:{stmp+5}], s{stmp}, v{vtmp}\nv_addc_co_u32 v{vtmp+1}, s[{stmp+4}:{stmp+5}], 0, v{vtmp+1}, s[{stmp+4}:{stmp+5}]")
    k(f"s_and_saveexec_b64 s[{stmp+6}:{stmp+7}], vcc\ns_cbranch_execz {ls}")
    k(f"global_load_dword v{vtmp+2}, v[{vtmp}:{vtmp+1}], off")
    k.label(ls)
    k(f"s_mov_b64 exec, s[{stmp+6}:{stmp+7}]")

def gen_loader(k, t, name, P, exp=None):
    L = f"{name}_ld{t.typ}"
    sX, sWQ, sBS = 8, 12, 36
    sG, sL = 40, 84
    sKx, sKq, sSt, sIt, sT0, sT1, sV = 56, 57, 58, 59, 62, 63, 31
    vLane, vXo, vSo, vQo = 2, 3, 4, 6
    k.label(L)
    if FUSED: FUSED.elect(k)
    k(f"s_sub_u32 s{sV}, s{sW}, 4")
    k(f"v_and_b32 v{vLane}, 63, v0")
    k(f"v_lshrrev_b32 v12, 3, v{vLane}\nv_and_b32 v13, 3, v12")
    k(f"v_and_b32 v14, 1, v13\nv_lshlrev_b32 v14, 2, v14\nv_lshrrev_b32 v15, 1, v13\nv_add_u32 v14, v14, v15")
    k(f"v_lshrrev_b32 v15, 5, v{vLane}\nv_lshl_add_u32 v14, v15, 3, v14")
    k(f"s_and_b32 s{sT0}, s{sV}, 1\ns_lshl_b32 s{sT1}, s{sT0}, 4\ns_and_b32 s4, s{sV}, 2\ns_add_u32 s{sT1}, s{sT1}, s4")
    k(f"v_add_u32 v14, s{sT1}, v14\nv_mul_u32_u24 v14, 1280, v14")
    k(f"s_lshl_b32 s{sT1}, s{sT0}, 2\nv_lshrrev_b32 v15, 4, v{vLane}\nv_add_u32 v15, s{sT1}, v15")
    k(f"v_and_b32 v16, 7, v{vLane}\nv_xor_b32 v15, v15, v16\nv_lshlrev_b32 v15, 4, v15")
    k(f"v_add_u32 v{vXo}, v14, v15")
    k(f"s_mul_i32 s4, s{sC}, 163840\ns_lshl_b32 s5, s{sV}, 10")
    for n in range(4): k(f"s_add_u32 s{sG+n}, s4, {n*40960}\ns_add_u32 s{sL+n}, s5, {n*4096}")
    k(f"s_lshl_b32 s{sKx}, s{sROT}, 7\ns_mul_i32 s{sKq}, s{sROT}, 245760\ns_mov_b32 s{sSt}, 0")
    k("s_waitcnt lgkmcnt(0)")
    srd(k, sX, 24, 2621440)
    def dma(gi, rs, vo, sk):
        k(f"s_add_u32 s{sT0}, s{sG+gi}, s{sk}\ns_add_u32 m0, s{sL+gi}, s{sSt}")
        if exp != "nodma": k(f"buffer_load_dwordx4 v{vo}, {s(rs,4)}, s{sT0} offen{DMAF.get(rs, '')} lds")
    for n in range(4): dma(n, sX, vXo, sKx)
    k(f"s_and_b32 s{sT0}, s{sV}, 1\ns_lshl_b32 s{sT1}, s{sT0}, 3\nv_add_u32 v14, s{sT1}, v12\nv_mul_u32_u24 v14, 1280, v14\nv_add_u32 v{vSo}, v14, v15")
    k(f"s_cmp_ge_u32 s{sV}, 2\ns_cselect_b32 s{sBS}, s22, s20\ns_cselect_b32 s{sBS+1}, s23, s21\ns_and_b32 s{sBS+1}, s{sBS+1}, 0xffff")
    k(f"s_mov_b32 s{sBS+2}, 819200\ns_mov_b32 s{sBS+3}, 0x20000")
    k(f"s_mul_i32 s4, s{sHG}, {80*1280}")
    for n in range(t.nP): k(f"s_add_u32 s{sG+4+n}, s4, {16*(t.p0+n)*1280}\ns_add_u32 s{sL+4+n}, s5, {t.wsoff + n*4096}")
    for n in range(t.nP): dma(4+n, sBS, vSo, sKx)
    srd(k, sWQ, 18, 2457600)
    nq = 3 if t.typ == "B" else 6
    base = 4 + t.nP
    def skip_last(j, body):
        if j == nq - 1:
            l = k.newlabel("skipdma")
            k(f"s_cmp_ge_u32 s{sV}, {3 if t.typ == 'B' else 2}\ns_cbranch_scc1 {l}")
            body(); k.label(l)
        else: body()
    for j in range(nq):
        gi = base + j
        k(f"s_add_u32 s{sT0}, s{sV}, {4*j}")
        if t.typ == "A":
            k(f"s_sub_u32 s{sT1}, s{sT0}, 11\ns_cmp_ge_u32 s{sT0}, 11\ns_cselect_b32 s{sT0}, s{sT1}, s{sT0}")
            k(f"s_cselect_b32 s4, 1, 0\ns_mul_i32 s{sG+gi}, s4, 1280\ns_add_u32 s{sG+gi}, s{sG+gi}, 1280\ns_mul_i32 s{sL+gi}, s4, 11264\ns_add_u32 s{sL+gi}, s{sL+gi}, 16384")
        else:
            k(f"s_mov_b32 s{sG+gi}, 0\ns_mov_b32 s{sL+gi}, 16384")
        k(f"s_lshl_b32 s{sT1}, s{sT0}, 10\ns_add_u32 s{sL+gi}, s{sL+gi}, s{sT1}")
        k(f"s_mul_i32 s{sT1}, s{sHG}, 160\ns_add_u32 s{sG+gi}, s{sG+gi}, s{sT1}")
        k(f"s_lshl_b32 s{sT0}, s{sT0}, 6\nv_add_u32 v12, s{sT0}, v{vLane}")
        k(f"v_mul_u32_u24 v13, 745, v12\nv_lshrrev_b32 v13, 16, v13")
        k(f"v_mul_u32_u24 v14, 88, v13\nv_sub_u32 v14, v12, v14")
        k(f"v_mul_u32_u24 v15, 205, v14\nv_lshrrev_b32 v15, 11, v15")
        k(f"v_mul_u32_u24 v16, 10, v15\nv_sub_u32 v16, v14, v16")
        k(f"v_lshl_add_u32 v15, v13, 3, v15\nv_mul_u32_u24 v15, 3840, v15\nv_lshl_add_u32 v15, v16, 4, v15")
        k(f"v_cmp_gt_u32 vcc, 80, v14\nv_mov_b32 v16, 0x7fffffff\nv_cndmask_b32 v{vQo+j}, v16, v15, vcc")
        skip_last(j, lambda: dma(gi, sWQ, vQo + j, sKq))
    def advance():
        k(f"s_add_u32 s{sKx}, s{sKx}, 128\ns_add_u32 s{sKq}, s{sKq}, 245760\ns_cmp_ge_u32 s{sKx}, 1280")
        k(f"s_cselect_b32 s{sKx}, 0, s{sKx}\ns_cselect_b32 s{sKq}, 0, s{sKq}")
        k(f"s_add_u32 s{sSt}, s{sSt}, {STAGE}\ns_cmp_ge_u32 s{sSt}, {3*STAGE}\ns_cselect_b32 s{sSt}, 0, s{sSt}")
    advance()
    def issue():
        for n in range(4): dma(n, sX, vXo, sKx)
        for n in range(t.nP): dma(4+n, sBS, vSo, sKx)
        for j in range(nq): skip_last(j, lambda: dma(base + j, sWQ, vQo + j, sKq))
        advance()
    lp, lb0 = k.newlabel("ldloop"), k.newlabel("ldb0")
    if XFIRST:
        nW = t.nP + nq - 1
        def adv_peek(kx): k(f"s_add_u32 s{kx}, s{sKx}, 128\ns_cmp_ge_u32 s{kx}, 1280\ns_cselect_b32 s{kx}, 0, s{kx}")
        for n in range(4): dma(n, sX, vXo, sKx)
        adv_peek(82)
        for n in range(4):
            k(f"s_add_u32 s{sT0}, s{sG+n}, s82\ns_add_u32 m0, s{sL+n}, {2*STAGE}")
            if exp != "nodma": k(f"buffer_load_dwordx4 v{vXo}, {s(sX,4)}, s{sT0} offen lds")
        def wpart():
            for n in range(t.nP): dma(4+n, sBS, vSo, sKx)
            for j in range(nq): skip_last(j, lambda: dma(base + j, sWQ, vQo + j, sKq))
            advance()
        wpart()
        k(f"s_waitcnt vmcnt({8 + nW})\ns_barrier")
        wpart()
        k(f"s_waitcnt vmcnt({nW})\ns_barrier")
        issue()
        k(f"s_mov_b32 s{sIt}, 1")
        if FUSED: k("s_mov_b32 s83, 7")
        k.label(lp)
        k("s_waitcnt vmcnt(10)\ns_barrier")
        issue()
    else:
        k(f"s_mov_b32 s{sIt}, -2")
        if FUSED: k("s_mov_b32 s83, 7")
        k.label(lp)
        k(f"s_cmp_eq_u32 s{sIt}, -2\ns_cbranch_scc1 {lb0}")
        k("s_waitcnt vmcnt(10)\ns_barrier")
        k.label(lb0)
        issue()
    if FUSED: k(f"s_add_u32 s{sIt}, s{sIt}, 1\ns_cmp_lg_u32 s{sIt}, s83\ns_cbranch_scc1 {lp}")
    else: k(f"s_add_u32 s{sIt}, s{sIt}, 1\ns_cmp_lg_u32 s{sIt}, 7\ns_cbranch_scc1 {lp}")
    P.stamp()
    return issue

def loader_tail(k, n_extra):
    k(f"s_waitcnt vmcnt({10 + n_extra})\ns_barrier\ns_waitcnt vmcnt({n_extra})\ns_barrier\ns_barrier")

class CR:
    def __init__(self, t):
        self.ACC = 0
        self.WF = 104
        self.XF = 156
        self.aX0, self.aX1, self.aW0, self.aW1, self.aT = 172, 173, 174, 175, 176
        self.LAM = 178
        self.vLane, self.vN, self.vG, self.vTid = 194, 195, 196, 197
        self.EA = 198
        self.TMP = 206
        self.t = t
        self.CL = 172
    def PH(self, i): return [152, 230][i]
    def accT(self, tt, i): return self.ACC + (tt*2 + i)*4
    def accS(self, u, i): return self.ACC + ((self.t.nT + u)*2 + i)*4

def gen_mainloop(k, t, R, exp=None, NB=None):
    NB = NB or NBAR
    sSt, sIt, sD, sN = 58, 59, 62, 63
    def reads(tile, st):
        w = R.WF + 4*tile
        if tile < t.nT:
            off = t.secs[tile // 5][1] + 5632*st + 8*(tile % 5)
            return [f"ds_read_b64_tr_b16 {v(w,2)}, v{R.aT} offset:{off}", f"ds_read_b64_tr_b16 {v(w+2,2)}, v{R.aT} offset:{off+640}"]
        u = tile - t.nT
        return [f"ds_read_b128 {v(w,4)}, v{R.aW0 if st == 0 else R.aW1} offset:{t.wsoff + 2048*u}"]
    def xreads(st):
        return [f"ds_read_b128 {v(R.XF + 8*st + 4*i, 4)}, v{R.aX0 if st == 0 else R.aX1} offset:{2048*i}" for i in range(2)]
    def mfma(tile, st, i):
        x = v(R.XF + 8*st + 4*i, 4); w = v(R.WF + 4*tile, 4)
        if tile < t.nT:
            d = v(R.accT(tile, i), 4); return f"v_mfma_f32_16x16x32_bf16 {d}, {w}, {x}, {d}"
        d = v(R.accS(tile - t.nT, i), 4); return f"v_mfma_f32_16x16x32_bf16 {d}, {x}, {w}, {d}"
    def build(last=False):
        ev = []; q = []
        def drain(n):
            for _ in range(n):
                if q: ev.append(q.pop(0))
        q += [("rd", r, ("x", 1)) for r in xreads(1)]
        if not last:
            q += [("s", f"s_add_u32 s{sN}, s{sSt}, {STAGE}"), ("s", f"s_cmp_ge_u32 s{sN}, {3*STAGE}"), ("s", f"s_cselect_b32 s{sN}, 0, s{sN}"),
                  ("s", f"s_sub_u32 s{sD}, s{sN}, s{sSt}"), ("s", f"s_mov_b32 s{sSt}, s{sN}")]
        for tile in range(t.ntile):
            for i in range(2):
                ev.append(("mm", tile, 0, i))
                if i == 1: q.extend([("rd", r, ("w", tile, 1)) for r in reads(tile, 1)])
                drain(2 if len(q) > 3 else 1)
        for tile in range(t.ntile):
            if tile == NB and not last:
                drain(len(q))
                ev.append(("bar",))
                q += [("rd", r, ("x", 0)) for r in xreads(0)]
                for tl in range(NB): q += [("rd", r, ("w", tl, 0)) for r in reads(tl, 0)]
            for i in range(2):
                ev.append(("mm", tile, 1, i))
                if last: drain(2); continue
                if tile >= NB and i == 1: q.extend([("rd", r, ("w", tile, 0)) for r in reads(tile, 0)])
                if tile < NB and not any(e[0] == "rd" for e in q) and not any(e[0] == "va" for e in ev) and tile >= 1:
                    q += [("va", f"v_add_u32 v{r}, s{sD}, v{r}") for r in (R.aX0, R.aX1, R.aW0, R.aW1, R.aT)]
                drain(2 if len(q) > 2 else 1)
            if not last and tile == NB - 1 and not any(e[0] == "va" for e in ev + q):
                q += [("va", f"v_add_u32 v{r}, s{sD}, v{r}") for r in (R.aX0, R.aX1, R.aW0, R.aW1, R.aT)]
        drain(len(q))
        return ev
    seq = build()
    ib = [n for n, e in enumerate(seq) if e[0] == "bar"][0]
    iva = [n for n, e in enumerate(seq) if e[0] == "va"]
    assert len(iva) == 5 and max(iva) < ib
    assert all(not (e[0] == "rd" and min(iva) < n < ib) for n, e in enumerate(seq)), "old-stage read after the address update"
    order0 = [e for e in seq[ib:] if e[0] == "rd"]
    for e in order0: k(e[1])
    def waits(sq, its):
        q = [e[2] for e in order0]
        res = []
        for it in range(its):
            res = []
            for e in sq:
                if e[0] == "rd": q.append(e[2])
                elif e[0] == "bar": q = []
                elif e[0] == "mm":
                    need_tags = {("w", e[1], e[2]), ("x", e[2])}
                    last = max([i for i, tg in enumerate(q) if tg in need_tags], default=-1)
                    if last >= 0:
                        n = min(len(q) - 1 - last, 15); res.append(n); q = q[len(q)-n:] if n else []
                    else: res.append(None)
        return res
    def emit(sq, cnt):
        ci = 0
        for e in sq:
            if e[0] == "rd":
                if exp != "nords": k(e[1])
            elif e[0] in ("s", "va"): k(e[1])
            elif e[0] == "bar": k("s_waitcnt lgkmcnt(0)\ns_barrier")
            else:
                c = cnt[ci]; ci += 1
                if c is not None: k(f"s_waitcnt lgkmcnt({c})")
                if exp != "nomfma": k(mfma(e[1], e[2], e[3]))
    peel = FUSED is not None
    lp = k.newlabel("main")
    k(f"s_mov_b32 s{sIt}, 0\ns_mov_b32 s{sSt}, 0")
    k.label(lp)
    emit(seq, waits(seq, 2))
    k(f"s_add_u32 s{sIt}, s{sIt}, 1\ns_cmp_lt_u32 s{sIt}, {9 if peel else 10}\ns_cbranch_scc1 {lp}")
    if peel:
        sl = build(last=True)
        emit(sl, waits(sl, 1))
    k("s_waitcnt lgkmcnt(0)")

def gen_compute_prologue(k, t, R, sWS, name=None):
    sLR, sLI, sLD, sWP = 8, 12, 16, 20
    k(f"s_load_dwordx2 s[4:5], s[0:1], {A_LRE}\ns_load_dwordx2 s[6:7], s[0:1], {A_LIM}")
    k(f"s_load_dwordx2 s[32:33], s[0:1], {A_LOGDT}\ns_load_dwordx2 s[34:35], s[0:1], {A_WPHI}\ns_load_dwordx2 s[36:37], s[0:1], {A_WS}")
    k(f"v_mov_b32 v{R.vTid}, v0\nv_and_b32 v{R.vLane}, 63, v0\nv_and_b32 v{R.vN}, 15, v0\nv_bfe_u32 v{R.vG}, v0, 4, 2")
    k("s_waitcnt lgkmcnt(0)")
    srd(k, sLR, 4, 1280); srd(k, sLI, 6, 1280); srd(k, sLD, 32, 1280); srd(k, sWP, 34, 25600); srd(k, sWS, 36, WS_SIZE)
    T0 = R.TMP
    k(f"v_lshlrev_b32 v{T0}, 4, v{R.vTid}\ns_mul_i32 s4, s{sHG}, 3200")
    k(f"v_cmp_gt_u32 vcc, 200, v{R.vTid}\nv_mov_b32 v{T0+1}, 0x7fffffff\nv_cndmask_b32 v{T0+1}, v{T0+1}, v{T0}, vcc")
    k(f"buffer_load_dwordx4 {v(T0+4,4)}, v{T0+1}, {s(sWP,4)}, s4 offen")
    k(f"v_and_b32 v{T0+20}, {63 if t.typ == 'B' else 15}, v{R.vLane}")
    k(f"s_mul_i32 s4, s{sHG}, 160\ns_add_u32 s4, s4, {32*t.p0}\nv_lshl_add_u32 v{T0+2}, v{T0+20}, 1, s4")
    load_lam_inputs(k, T0+2, T0+8, T0+9, T0+10, sLR, sLI, sLD)
    for r in range(8*t.ntile): k(f"v_mov_b32 v{R.ACC+r}, 0")
    k(f"v_lshrrev_b32 v{T0+2}, 1, v{R.vN}\nv_xor_b32 v{T0+2}, v{T0+2}, v{R.vG}")
    k(f"v_lshlrev_b32 v{T0+3}, 7, v{R.vN}")
    k(f"v_lshl_add_u32 v{R.aW0}, v{T0+2}, 4, v{T0+3}\nv_xor_b32 v{T0+2}, 4, v{T0+2}\nv_lshl_add_u32 v{R.aW1}, v{T0+2}, 4, v{T0+3}")
    k(f"s_lshl_b32 s4, s{sW}, 12\nv_add_u32 v{R.aX0}, s4, v{R.aW0}\nv_add_u32 v{R.aX1}, s4, v{R.aW1}")
    k(f"v_lshrrev_b32 v{T0+2}, 2, v{R.vN}\nv_lshl_add_u32 v{T0+2}, v{R.vG}, 3, v{T0+2}\nv_mul_u32_u24 v{T0+2}, 160, v{T0+2}")
    k(f"v_lshl_add_u32 v{T0+2}, v{R.vG}, 7, v{T0+2}\nv_and_b32 v{T0+3}, 3, v{R.vN}\nv_mul_u32_u24 v{T0+3}, 40, v{T0+3}\nv_add_u32 v{R.aT}, v{T0+2}, v{T0+3}")
    k(f"v_mov_b32 v{T0+24}, 0\nv_mov_b32 v{T0+25}, 0\nv_mov_b32 v{T0+26}, 0\nv_mov_b32 v{T0+27}, 0")
    k(f"v_lshlrev_b32 v{T0+2}, 4, v{R.vTid}\nv_add_u32 v{T0+2}, {L_ZERO}, v{T0+2}")
    k(f"v_and_b32 v{T0+3}, 3, v{R.vTid}\nv_lshlrev_b32 v{T0+3}, 4, v{T0+3}\nv_add_u32 v{T0+3}, {L_CNT}, v{T0+3}")
    k(f"v_cmp_gt_u32 vcc, 48, v{R.vTid}\nv_cndmask_b32 v{T0+2}, v{T0+3}, v{T0+2}, vcc")
    k(f"ds_write_b128 v{T0+2}, {v(T0+24,4)}")
    k("s_waitcnt vmcnt(0)")
    k(f"v_add_u32 v{T0}, {L_WPHI}, v{T0}\nv_mov_b32 v{T0+1}, {L_CNT + 64}")
    k(f"v_cmp_gt_u32 vcc, 200, v{R.vTid}\nv_cndmask_b32 v{T0}, v{T0+1}, v{T0}, vcc")
    k(f"ds_write_b128 v{T0}, {v(T0+4,4)}")
    for x in (T0+8, T0+9, T0+10): k(f"v_lshlrev_b32 v{x}, 16, v{x}")
    L = T0 + 12
    lam_calc(k, T0+8, T0+9, T0+10, L, L+1, T0+2, T0+3)
    k(f"v_mov_b32 v{L+2}, v{L}\nv_mov_b32 v{L+3}, v{L+1}")
    csquare(k, L+2, L+3, T0+2); csquare(k, L+2, L+3, T0+2)
    k(f"v_mov_b32 v{L+4}, v{L+2}\nv_mov_b32 v{L+5}, v{L+3}")
    csquare(k, L+4, L+5, T0+2)
    k(f"v_lshlrev_b32 v{T0+2}, 3, v{T0+20}\nv_add_u32 v{T0+2}, {L_L8T}, v{T0+2}\nds_write_b64 v{T0+2}, {v(L+4,2)}")
    k(f"v_lshlrev_b32 v{T0+3}, 4, v{T0+20}\nv_add_u32 v{T0+3}, {L_LAMT}, v{T0+3}\nds_write_b128 v{T0+3}, {v(L,4)}")
    k(f"v_lshlrev_b32 v{T0+3}, 4, v{R.vN}\nv_add_u32 v{T0+3}, {L_LAMT}, v{T0+3}\ns_waitcnt lgkmcnt(0)")
    for p in range(t.nP): k(f"ds_read_b128 {v(R.LAM+4*p,4)}, v{T0+3} offset:{256*p}")
    k("s_waitcnt lgkmcnt(0)")

def u_pair(R, p, step, im):
    return R.accS(2*p + im, step >> 1) + 2*(step & 1)

class Buf:
    def __init__(self): self.lines = []
    def __call__(self, line): self.lines += [l.strip() for l in line.split("\n") if l.strip()]
def zip_emit(k, bufs):
    n = max(len(b.lines) for b in bufs)
    for i in range(n):
        for b in bufs:
            if i < len(b.lines): k(b.lines[i])

def gen_stageA(k, t, R):
    T0 = R.TMP
    k(f"s_lshl_b32 s4, s{sW}, 2\nv_add_u32 v{T0}, s4, v{R.vG}\nv_lshlrev_b32 v{T0}, 9, v{T0}\nv_lshl_add_u32 v{T0}, v{R.vN}, 3, v{T0}\nv_add_u32 v{T0}, {L_ETAB}, v{T0}")
    bufs = []
    for p in range(t.nP):
        b = Buf(); bufs.append(b)
        lam = R.LAM + 4*p
        W = R.WF + 14*p
        HR, HI = u_pair(R, p, 0, 0), u_pair(R, p, 0, 1)
        for st in range(1, 4):
            a_, b_ = W + 4*(st & 1), W + 2 + 4*(st & 1)
            tm = W + 8
            b(f"v_pk_fma_f32 {v(tm,2)}, {v(lam,2)}, {v(HR,2)}, {v(u_pair(R,p,st,0),2)} op_sel_hi:[0,1,1]")
            b(f"v_pk_fma_f32 {v(tm+2,2)}, {v(lam,2)}, {v(HI,2)}, {v(u_pair(R,p,st,1),2)} op_sel_hi:[0,1,1]")
            b(f"v_pk_fma_f32 {v(a_,2)}, {v(lam,2)}, {v(HI,2)}, {v(tm,2)} op_sel:[1,0,0] op_sel_hi:[1,1,1] neg_lo:[1,0,0] neg_hi:[1,0,0]")
            b(f"v_pk_fma_f32 {v(b_,2)}, {v(lam,2)}, {v(HR,2)}, {v(tm+2,2)} op_sel:[1,0,0] op_sel_hi:[1,1,1]")
            HR, HI = a_, b_
        ea = R.EA + 2*p; e = W + 12
        b(f"v_fma_f32 v{e}, v{lam+2}, v{HR}, v{HR+1}\nv_fma_f32 v{e+1}, v{lam+2}, v{HI}, v{HI+1}")
        b(f"v_fma_f32 v{e}, -v{lam+3}, v{HI}, v{e}\nv_fma_f32 v{e+1}, v{lam+3}, v{HR}, v{e+1}")
        b(f"ds_write_b64 v{T0}, {v(e,2)} offset:{128*p}")
        b(f"v_mov_b32 v{ea}, v{HR}\nv_mov_b32 v{ea+1}, v{HI}")
    zip_emit(k, bufs)
    k(f"v_mov_b32 v{T0+2}, {L_CNT}\nv_mov_b32 v{T0+1}, 1")
    k("s_waitcnt lgkmcnt(0)")
    lds_signal(k, T0+2, T0+1)

def gen_features2(k, t, R):
    T0 = R.TMP
    QB = [R.WF, R.WF + 12]
    SETS = [208, 220, 232, 244, 160]
    PV = [0, 20]
    for i in range(2):
        for tt in range(5):
            a0 = R.accT(tt, i)
            k(f"v_cvt_pk_bf16_f32 v{QB[i]+2*tt}, v{a0}, v{a0+1}\nv_cvt_pk_bf16_f32 v{QB[i]+2*tt+1}, v{a0+2}, v{a0+3}")
    for z in (QB[0]+10, QB[0]+11, QB[1]+10, QB[1]+11): k(f"v_mov_b32 v{z}, 0")
    k("s_waitcnt lgkmcnt(0)")
    for it in range(5):
        b = SETS[it]
        for m in range(3):
            for i in range(2):
                d = v(PV[i] + 4*it, 4)
                k(f"v_mfma_f32_16x16x32_bf16 {d}, {v(b+4*m,4)}, {v(QB[i]+4*m,4)}, {d if m else 0}")
    bufs = []
    for i in range(2):
        b = Buf(); bufs.append(b)
        P_ = PV[i]
        MX, MN, BP, SP, SM = T0 + 2 + 10*i, T0 + 3 + 10*i, T0 + 4 + 10*i, T0 + 6 + 10*i, T0 + 8 + 10*i
        EM = [R.WF, R.WF + 24][i]
        PH = R.PH(i)
        b(f"v_max3_f32 v{MX}, v{P_}, v{P_+1}, v{P_+2}\nv_min3_f32 v{MN}, v{P_}, v{P_+1}, v{P_+2}")
        for j in range(3, 19, 2): b(f"v_max3_f32 v{MX}, v{MX}, v{P_+j}, v{P_+j+1}\nv_min3_f32 v{MN}, v{MN}, v{P_+j}, v{P_+j+1}")
        b(f"v_max_f32 v{MX}, v{MX}, v{P_+19}\nv_min_f32 v{MN}, v{MN}, v{P_+19}")
        b(f"v_mul_f32 v{BP}, v{R.CL}, v{MX}\nv_mul_f32 v{BP+1}, v{R.CL}, v{MN}")
        for j in range(0, 20, 2):
            b(f"v_pk_fma_f32 {v(EM+j,2)}, {v(P_+j,2)}, {v(R.CL,2)}, {v(BP,2)} op_sel:[0,0,1] op_sel_hi:[1,0,1] neg_lo:[1,0,0] neg_hi:[1,0,0]")
            b(f"v_pk_fma_f32 {v(P_+j,2)}, {v(P_+j,2)}, {v(R.CL,2)}, {v(BP,2)} op_sel_hi:[1,0,0] neg_lo:[0,0,1] neg_hi:[0,0,1]")
        for j in range(20): b(f"v_exp_f32 v{P_+j}, v{P_+j}\nv_exp_f32 v{EM+j}, v{EM+j}")
        b(f"v_pk_add_f32 {v(SP,2)}, {v(P_,2)}, {v(P_+2,2)}\nv_pk_add_f32 {v(SM,2)}, {v(EM,2)}, {v(EM+2,2)}")
        for j in range(4, 20, 2): b(f"v_pk_add_f32 {v(SP,2)}, {v(SP,2)}, {v(P_+j,2)}\nv_pk_add_f32 {v(SM,2)}, {v(SM,2)}, {v(EM+j,2)}")
        b(f"v_add_f32 v{SP}, v{SP}, v{SP+1}\nv_add_f32 v{SM}, v{SM}, v{SM+1}\nv_rcp_f32 v{SP}, v{SP}\nv_rcp_f32 v{SM}, v{SM}")
        for j in range(0, 20, 2):
            b(f"v_pk_mul_f32 {v(P_+j,2)}, {v(P_+j,2)}, {v(SP,2)} op_sel_hi:[1,0]\nv_pk_mul_f32 {v(EM+j,2)}, {v(EM+j,2)}, {v(SM,2)} op_sel_hi:[1,0]")
        for j in range(10): b(f"v_cvt_pk_bf16_f32 v{PH+j}, v{P_+2*j}, v{P_+2*j+1}\nv_cvt_pk_bf16_f32 v{PH+10+j}, v{EM+2*j}, v{EM+2*j+1}")
    k(f"v_mov_b32 v{R.CL}, {LOG2E:#x}")
    zip_emit(k, bufs)

def feat_addr(k, R):
    T0 = R.TMP
    aW = 177
    k(f"v_and_b32 v{T0+2}, 3, v{R.vN}\nv_lshrrev_b32 v{T0+3}, 2, v{R.vN}")
    k(f"v_mul_u32_u24 v{aW}, 800, v{T0+2}\nv_mul_u32_u24 v{T0+3}, 40, v{T0+3}\nv_add_u32 v{aW}, v{aW}, v{T0+3}\nv_add_u32 v{aW}, {L_WPHI}, v{aW}")
    k(f"v_cmp_eq_u32 vcc, v{T0+2}, v{R.vG}\nv_mov_b32 v{T0+3}, {L_ZERO}\nv_cndmask_b32 v{aW}, v{T0+3}, v{aW}, vcc")
    for it, b in enumerate([208, 220, 232, 244, 160]):
        for m in range(2):
            for h in range(2): k(f"ds_read_b64_tr_b16 {v(b + 4*m + 2*h, 2)}, v{aW} offset:{40*(8*m + 4*h) + 8*it}")
        k(f"ds_read_b64_tr_b16 {v(b + 8, 2)}, v{aW} offset:{40*16 + 8*it}")
        k(f"v_mov_b32 v{b+10}, 0\nv_mov_b32 v{b+11}, 0")

def tok_local(k, R, i, dst, tmp):
    k(f"v_lshrrev_b32 v{dst}, 2, v{R.vN}\nv_lshlrev_b32 v{dst}, 3, v{dst}\nv_and_b32 v{tmp}, 1, v{R.vN}\nv_lshl_add_u32 v{dst}, v{tmp}, 2, v{dst}")
    k(f"v_bfe_u32 v{tmp}, v{R.vN}, 1, 1\nv_add_u32 v{dst}, v{dst}, v{tmp}")
    if i: k(f"v_add_u32 v{dst}, {2*i}, v{dst}")

def gen_stageB(k, t, R, sWS, trbase):
    if FUSED: FUSED.jit(k, "stageB")
    T0 = R.TMP
    aC, aTW, aTR, vSt, aI = T0, T0 + 1, T0 + 2, T0 + 3, T0 + 4
    k(f"s_lshl_b32 s4, s{sW}, 2\nv_add_u32 v{aC}, s4, v{R.vG}\nv_lshlrev_b32 v{aC}, 9, v{aC}\nv_lshl_add_u32 v{aC}, v{R.vN}, 3, v{aC}\nv_add_u32 v{aC}, {L_CTAB}, v{aC}")
    k(f"v_lshlrev_b32 v{aI}, 3, v{R.vN}\nv_add_u32 v{aI}, {L_CIN}, v{aI}")
    k(f"s_mul_i32 s4, s{sW}, {t.nP*2560}\ns_add_u32 s4, s4, {trbase}")
    k(f"v_mul_u32_u24 v{aTW}, 80, v{R.vN}\nv_lshl_add_u32 v{aTW}, v{R.vG}, 4, v{aTW}\nv_add_u32 v{aTW}, s4, v{aTW}")
    k(f"v_lshrrev_b32 v{aTR}, 2, v{R.vN}\nv_lshl_add_u32 v{aTR}, v{R.vG}, 3, v{aTR}\nv_mul_u32_u24 v{aTR}, 80, v{aTR}\nv_and_b32 v{vSt}, 3, v{R.vN}\nv_lshl_add_u32 v{aTR}, v{vSt}, 4, v{aTR}\nv_add_u32 v{aTR}, s4, v{aTR}")
    k(f"v_lshlrev_b32 v{vSt}, 4, v{R.vLane}")
    k(f"s_lshl_b32 s4, s{sC}, 3\ns_lshl_b32 s5, s{sW}, 1\ns_add_u32 s4, s4, s5\ns_mul_i32 s4, s4, 40960")
    k(f"s_mul_i32 s5, s{sHG}, 5\ns_add_u32 s5, s5, {t.p0}\ns_lshl_b32 s5, s5, 10\ns_add_u32 s4, s4, s5\ns_add_u32 s6, s4, {WS_S}")
    k(f"v_mov_b32 v{T0+6}, {L_CNT + 8}")
    lds_wait(k, T0+6, T0+7, 1, 4)
    if BPRIO: k(f"s_setprio {BPRIO}")
    W0 = R.WF
    for p in range(t.nP):
        W = W0 + 16*p
        k(f"ds_read_b64 {v(W,2)}, v{aC} offset:{128*p}\nds_read_b64 {v(W+2,2)}, v{aC} offset:{L_LPT - L_CTAB + 128*p}\nds_read_b64 {v(W+4,2)}, v{aI} offset:{128*p}")
    k("s_waitcnt lgkmcnt(0)")
    bufs = []
    for p in range(t.nP):
        b = Buf(); bufs.append(b)
        W = W0 + 16*p; lam = R.LAM + 4*p; ea = R.EA + 2*p
        c = W + 6; H = W + 8; tm = W + 12
        b(f"v_pk_fma_f32 {v(c,2)}, {v(W+2,2)}, {v(W+4,2)}, {v(W,2)} op_sel_hi:[0,1,1]")
        b(f"v_pk_fma_f32 {v(c,2)}, {v(W+2,2)}, {v(W+4,2)}, {v(c,2)} op_sel:[1,1,0] op_sel_hi:[1,0,1] neg_lo:[1,0,0]")
        b(f"v_mov_b32 v{H}, v{c}\nv_mov_b32 v{H+2}, v{c+1}")
        b(f"v_fma_f32 v{H+1}, v{lam+2}, v{c}, v{ea}\nv_fma_f32 v{H+3}, v{lam+2}, v{c+1}, v{ea+1}")
        b(f"v_fma_f32 v{H+1}, -v{lam+3}, v{c+1}, v{H+1}\nv_fma_f32 v{H+3}, v{lam+3}, v{c}, v{H+3}")
        HR, HI = H, H + 2
        for st in range(4):
            ur, ui = u_pair(R, p, st, 0), u_pair(R, p, st, 1)
            b(f"v_pk_fma_f32 {v(tm,2)}, {v(lam,2)}, {v(HR,2)}, {v(ur,2)} op_sel_hi:[0,1,1]")
            b(f"v_pk_fma_f32 {v(tm+2,2)}, {v(lam,2)}, {v(HI,2)}, {v(ui,2)} op_sel_hi:[0,1,1]")
            b(f"v_pk_fma_f32 {v(ur,2)}, {v(lam,2)}, {v(HI,2)}, {v(tm,2)} op_sel:[1,0,0] op_sel_hi:[1,1,1] neg_lo:[1,0,0] neg_hi:[1,0,0]")
            b(f"v_pk_fma_f32 {v(ui,2)}, {v(lam,2)}, {v(HR,2)}, {v(tm+2,2)} op_sel:[1,0,0] op_sel_hi:[1,1,1]")
            HR, HI = ur, ui
        for im in range(2):
            r = [u_pair(R, p, st, im) for st in range(4)]
            pk = W + 4*im
            for st in range(4): b(f"v_cvt_pk_bf16_f32 v{pk+st}, v{r[st]}, v{r[st]+1}")
            b(f"ds_write_b128 v{aTW}, {v(pk,4)} offset:{p*2560 + im*1280}")
    zip_emit(k, bufs)
    k("s_waitcnt lgkmcnt(0)")
    n = 0
    for p in range(t.nP):
        for i2 in range(2):
            f = W0 + 16*p + 8 + 4*i2; n += 1
            k(f"ds_read_b64_tr_b16 {v(f,2)}, v{aTR} offset:{p*2560 + 8*i2}\nds_read_b64_tr_b16 {v(f+2,2)}, v{aTR} offset:{p*2560 + 8*i2 + 320}")
    n = 0
    for p in range(t.nP):
        for i2 in range(2):
            f = W0 + 16*p + 8 + 4*i2
            k(f"s_add_u32 s5, s6, {i2*40960 + p*1024}")
            k(f"s_waitcnt lgkmcnt({min(15, 2*(2*t.nP - 1 - n))})")
            k(f"buffer_store_dwordx4 {v(f,4)}, v{vSt}, {s(sWS,4)}, s5 offen{WT}")
            n += 1

def gen_compute(k, t, name, P, stop=None, exp=None):
    R = CR(t)
    sWS = 40
    k.label(f"{name}_cp{t.typ}")
    if CODE_PF:
        lcp = k.newlabel("nocp")
        k(f"s_cmp_lg_u32 s{sW}, 3\ns_cbranch_scc1 {lcp}\nv_and_b32 v1, 63, v0")
        code_prefetch(k, name, f"{name}_end", False, 244, 44, 1)
        k.label(lcp)
    gen_compute_prologue(k, t, R, sWS, name)
    P.stamp()
    k("s_barrier")
    P.stamp()
    gen_mainloop(k, t, R, exp)
    P.stamp()
    k("s_nop 7")
    if stop == "acc":
        k(f"s_lshl_b32 s4, s2, 2\ns_add_u32 s4, s4, s{sW}\ns_lshl_b32 s4, s4, 15\ns_add_u32 s4, s4, 0x2000000")
        k(f"s_mov_b32 s{sWS+2}, 0x4000000")
        k(f"v_lshlrev_b32 v{R.TMP}, 9, v{R.vLane}")
        for r in range(0, 8*t.ntile, 4): k(f"buffer_store_dwordx4 {v(r,4)}, v{R.TMP}, {s(sWS,4)}, s4 offen offset:{4*r}")
        k(f"s_branch {name}_end")
        return
    if FUSED: FUSED.jit(k, "stageA")
    gen_stageA(k, t, R)
    if FUSED: FUSED.jit(k, "feat")
    P.stamp()
    feat_addr(k, R)
    T0 = R.TMP
    gen_features2(k, t, R)
    if t.typ == "B":
        k(f"s_lshl_b32 s4, s{sHG}, 7\ns_lshl_b32 s5, s{sC}, 1\ns_add_u32 s4, s4, s5\ns_lshr_b32 s5, s{sW}, 1\ns_add_u32 s4, s4, s5\ns_mul_i32 s4, s4, 5120")
        k(f"s_and_b32 s5, s{sW}, 1\ns_lshl_b32 s5, s5, 9\ns_add_u32 s4, s4, s5\ns_add_u32 s4, s4, {WS_PQ}\ns_add_u32 s5, s4, 4096")
        k(f"v_lshlrev_b32 v{T0+2}, 4, v{R.vN}\nv_mul_u32_u24 v{T0+3}, {32*5120}, v{R.vG}\nv_add_u32 v{T0+2}, v{T0+2}, v{T0+3}")
        for i in range(2):
            PH = R.PH(i)
            for m in range(4): k(f"buffer_store_dwordx4 {v(PH+4*m,4)}, v{T0+2}, {s(sWS,4)}, s4 offen offset:{1024*m + 256*i}{WT}")
            k(f"buffer_store_dwordx4 {v(PH+16,4)}, v{T0+2}, {s(sWS,4)}, s5 offen offset:{256*i}{WT}")
        if FUSED: FUSED.early_done(k, 0)
        P.stamp()
        gen_stageB(k, t, R, sWS, 0)
    else:
        if FUSED:
            k(f"v_mov_b32 v{T0+4}, {L_CNT}")
            lds_wait(k, T0+4, T0+5, 4, 4, sleep=0)
        VP = [R.WF, R.WF + 12]
        tok_local(k, R, 0, T0+2, T0+3)
        k(f"s_lshl_b32 s4, s{sW}, 5\nv_add_u32 v{T0+2}, s4, v{T0+2}\nv_mul_u32_u24 v{T0+2}, 144, v{T0+2}\nv_mul_u32_u24 v{T0+3}, 18432, v{R.vG}\nv_add_u32 v{T0+2}, v{T0+2}, v{T0+3}")
        for i in range(2):
            PH = R.PH(i)
            for j in range(5): k(f"ds_write_b128 v{T0+2}, {v(PH+4*j,4)} offset:{16*j + 288*i}")
        for i in range(2):
            for tt in range(5):
                a0 = R.accT(5 + tt, i)
                k(f"v_cvt_pk_bf16_f32 v{VP[i]+2*tt}, v{a0}, v{a0+1}\nv_cvt_pk_bf16_f32 v{VP[i]+2*tt+1}, v{a0+2}, v{a0+3}")
            k(f"v_mov_b32 v{VP[i]+10}, 0x3f80\nv_mov_b32 v{VP[i]+11}, 0")
            for j in range(3): k(f"ds_write_b128 v{T0+2}, {v(VP[i]+4*j,4)} offset:{80 + 16*j + 288*i}")
        k("s_waitcnt lgkmcnt(0)")
        k(f"v_mov_b32 v{T0}, {L_CNT + 4}\nv_mov_b32 v{T0+1}, 1")
        lds_signal(k, T0, T0+1)
        lds_wait(k, T0, T0+1, 4, 4)
        P.stamp()
        aK = T0 + 2
        k(f"v_lshrrev_b32 v{aK}, 2, v{R.vN}\nv_lshl_add_u32 v{aK}, v{R.vG}, 3, v{aK}\nv_mul_u32_u24 v{aK}, 144, v{aK}\nv_and_b32 v{T0+3}, 3, v{R.vN}\nv_lshl_add_u32 v{aK}, v{T0+3}, 3, v{aK}")
        k(f"s_mul_i32 s4, s{sW}, 18432\nv_add_u32 v{aK}, s4, v{aK}")
        KD = R.WF
        OPS = R.WF + 24
        def rdk(ks):
            b = OPS + 20*(ks & 1)
            for o, off in enumerate((0, 32, 64, 80, 112)):
                k(f"ds_read_b64_tr_b16 {v(b+4*o,2)}, v{aK} offset:{ks*4608 + off}\nds_read_b64_tr_b16 {v(b+4*o+2,2)}, v{aK} offset:{ks*4608 + off + 576}")
        rdk(0)
        for ks in range(4):
            if ks < 3: rdk(ks + 1)
            k(f"s_waitcnt lgkmcnt({10 if ks < 3 else 0})")
            b = OPS + 20*(ks & 1)
            for ft in range(3):
                for vt in range(2):
                    d = v(KD + 4*(ft*2 + vt), 4)
                    k(f"v_mfma_f32_16x16x32_bf16 {d}, {v(b+4*ft,4)}, {v(b+12+4*vt,4)}, {d if ks else 0}")
        if FUSED:
            FUSED.fetch_nonce(k)
            vo = T0 + 4
            k(f"s_lshl_b32 s4, s{sW}, 12\ns_add_u32 s4, s4, {L_KVO}")
            k(f"v_mul_u32_u24 v{vo}, 160, v{R.vN}\nv_lshl_add_u32 v{vo}, v{R.vG}, 4, v{vo}\nv_add_u32 v{vo}, s4, v{vo}\ns_add_u32 s5, s4, 3584\nv_mov_b32 v{vo+4}, s5")
            k(f"v_add_u32 v{vo+1}, 2560, v{vo}\nv_add_u32 v{vo+2}, 128, v{vo}\nv_add_u32 v{vo+3}, {2560+128}, v{vo}")
            k(f"v_cmp_gt_u32 vcc, 5, v{R.vN}\nv_cndmask_b32 v{vo+1}, v{vo+4}, v{vo+1}, vcc\nv_cndmask_b32 v{vo+3}, v{vo+4}, v{vo+3}, vcc")
            k(f"v_cmp_gt_u32 vcc, 2, v{R.vG}\nv_cndmask_b32 v{vo+2}, v{vo+4}, v{vo+2}, vcc\nv_cndmask_b32 v{vo+3}, v{vo+4}, v{vo+3}, vcc")
            for x in (0, 4): k(f"v_mov_b32 v{T0+12+x}, v250\nv_mov_b32 v{T0+13+x}, v251")
            for ft in range(3):
                for vt in range(2):
                    d = KD + 4*(ft*2 + vt); pk = T0 + 10 + 4*((ft*2 + vt) & 1)
                    k(f"v_cvt_pk_bf16_f32 v{pk}, v{d}, v{d+1}\nv_cvt_pk_bf16_f32 v{pk+1}, v{d+2}, v{d+3}")
                    if ft < 2: k(f"ds_write_b128 v{vo + vt}, {v(pk,4)} offset:{64*ft}")
                    else: k(f"ds_write_b128 v{vo + 2 + vt}, {v(pk,4)}")
            k(f"v_lshlrev_b32 v{vo}, 4, v{R.vLane}\nv_add_u32 v{vo+1}, s4, v{vo}\ns_waitcnt lgkmcnt(0)")
            for x in range(4): k(f"ds_read_b128 {v(KD+4*x,4)}, v{vo+1} offset:{1024*x}")
            k(f"s_lshl_b32 s4, s{sHG}, 2\ns_add_u32 s4, s4, s{sW}\ns_lshl_b32 s4, s4, 4\ns_add_u32 s4, s4, s{sC}\ns_lshl_b32 s4, s4, 12\ns_add_u32 s4, s4, {WS_KVT}")
            k("s_waitcnt lgkmcnt(0)")
            for x in range(4): k(f"buffer_store_dwordx4 {v(KD+4*x,4)}, v{vo}, {s(sWS,4)}, s4 offen offset:{1024*x}{WT}")
        else:
            vo = T0 + 4
            k(f"s_lshl_b32 s4, s{sW}, 11\ns_add_u32 s4, s4, {L_KVO}")
            k(f"v_mul_u32_u24 v{vo}, 80, v{R.vN}\nv_lshl_add_u32 v{vo}, v{R.vG}, 3, v{vo}\nv_add_u32 v{vo}, s4, v{vo}\nv_mov_b32 v{vo+4}, {L_CNT + 64}")
            k(f"v_add_u32 v{vo+1}, 1280, v{vo}\nv_add_u32 v{vo+2}, 64, v{vo}\nv_add_u32 v{vo+3}, {1280+64}, v{vo}")
            k(f"v_cmp_gt_u32 vcc, 5, v{R.vN}\nv_cndmask_b32 v{vo+1}, v{vo+4}, v{vo+1}, vcc\nv_cndmask_b32 v{vo+3}, v{vo+4}, v{vo+3}, vcc")
            k(f"v_cmp_gt_u32 vcc, 2, v{R.vG}\nv_cndmask_b32 v{vo+2}, v{vo+4}, v{vo+2}, vcc\nv_cndmask_b32 v{vo+3}, v{vo+4}, v{vo+3}, vcc")
            for ft in range(3):
                for vt in range(2):
                    d = KD + 4*(ft*2 + vt); pk = T0 + 10 + 2*((ft*2 + vt) & 1)
                    k(f"v_cvt_pk_bf16_f32 v{pk}, v{d}, v{d+1}\nv_cvt_pk_bf16_f32 v{pk+1}, v{d+2}, v{d+3}")
                    if ft < 2: k(f"ds_write_b64 v{vo + vt}, {v(pk,2)} offset:{32*ft}")
                    else: k(f"ds_write_b64 v{vo + 2 + vt}, {v(pk,2)}")
            k(f"v_lshlrev_b32 v{vo}, 4, v{R.vLane}\nv_add_u32 v{vo+1}, s4, v{vo}\ns_waitcnt lgkmcnt(0)")
            k(f"ds_read_b128 {v(KD,4)}, v{vo+1}\nds_read_b128 {v(KD+4,4)}, v{vo+1} offset:1024")
            k(f"s_lshl_b32 s4, s{sHG}, 2\ns_add_u32 s4, s4, s{sW}\ns_lshl_b32 s4, s4, 4\ns_add_u32 s4, s4, s{sC}\ns_lshl_b32 s4, s4, 11\ns_add_u32 s4, s4, {WS_KVP}")
            k("s_waitcnt lgkmcnt(0)")
            k(f"buffer_store_dwordx4 {v(KD,4)}, v{vo}, {s(sWS,4)}, s4 offen{WT}\nbuffer_store_dwordx4 {v(KD+4,4)}, v{vo}, {s(sWS,4)}, s4 offen offset:1024{WT}")
        P.stamp()
        gen_stageB(k, t, R, sWS, 73728)
    P.stamp()
    if FUSED: FUSED.compute_done(k, name)
    else: k(f"s_branch {name}_fin")

H_LR, H_LI, H_LD, H_WS, H_DBG, H_NONCE = 8, 12, 16, 20, 24, 34
def gen_helper_early(k, t):
    k(f"s_load_dwordx2 s[36:37], s[0:1], {A_WS}\ns_load_dwordx2 s[{H_DBG}:{H_DBG+1}], s[0:1], {A_DBG}")
    if FUSED:
        k("s_waitcnt lgkmcnt(0)")
        srd(k, H_WS, 36, WS_SIZE)
        k(f"v_mov_b32 v104, 128\nglobal_load_dwordx2 v[106:107], v104, s[{H_DBG}:{H_DBG+1}] sc1")
        return
    k(f"s_memrealtime s[{H_NONCE}:{H_NONCE+1}]")
    k("s_waitcnt lgkmcnt(0)")
    srd(k, H_WS, 36, WS_SIZE)
    k(f"s_or_b32 s{H_NONCE}, s{H_NONCE}, 1")
    k(f"v_mov_b32 v100, s{H_NONCE}\nv_mov_b32 v101, s{H_NONCE+1}\nv_mov_b32 v102, 0\nv_mov_b32 v103, 0")
    k(f"s_lshl_b32 s4, s{sQ}, 3\nv_mov_b32 v104, s4")
    k("s_mov_b64 s[60:61], exec\ns_mov_b64 exec, 1")
    k(f"global_atomic_cmpswap_x2 v[106:107], v104, v[100:103], s[{H_DBG}:{H_DBG+1}] sc0 sc1")
    k("s_mov_b64 exec, s[60:61]")

def gen_helper_tables(k, t):
    vCh, vP, L8, L128 = 20, 21, 26, 28
    k(f"v_and_b32 v{vCh}, {63 if t.typ == 'B' else 15}, v0")
    k(f"s_mul_i32 s4, s{sHG}, 80\ns_add_u32 s4, s4, {16*t.p0}\nv_add_u32 v{vP}, s4, v{vCh}")
    k(f"v_lshlrev_b32 v30, 3, v{vCh}\nv_add_u32 v31, {L_L8T}, v30\nds_read_b64 {v(L8,2)}, v31")
    k(f"v_add_u32 v31, {L_CTAB}, v30\nv_add_u32 v62, {L_CIN}, v30\nv_add_u32 v30, {L_ETAB}, v30")
    k("v_mov_b32 v66, 1.0\nv_mov_b32 v67, 0\nv_mov_b32 v60, 0\nv_mov_b32 v61, 0")
    k("s_waitcnt lgkmcnt(0)")
    k(f"v_mov_b32 v{L128}, v{L8}\nv_mov_b32 v{L128+1}, v{L8+1}")
    for lv in range(4):
        csquare(k, L128, L128+1, 59)
        if lv < 3: k(f"v_mov_b32 v{32+2*lv}, v{L128}\nv_mov_b32 v{33+2*lv}, v{L128+1}")
    for sg in range(16):
        k(f"ds_write_b64 v31, v[66:67] offset:{L_LPT - L_CTAB + 512*sg}")
        if sg < 15:
            k(f"v_pk_mul_f32 v[64:65], {v(L8,2)}, v[66:67] op_sel_hi:[0,1]")
            k(f"v_pk_fma_f32 v[66:67], {v(L8,2)}, v[66:67], v[64:65] op_sel:[1,1,0] op_sel_hi:[1,0,1] neg_lo:[1,0,0]")
    k(f"ds_write_b64 v31, v[60:61]")

def gen_helper(k, t, name, P):
    sWS, sN = H_WS, H_NONCE
    vCh, vP = 20, 21
    k("s_waitcnt vmcnt(0)")
    L8, L128 = 26, 28
    if FUSED:
        FUSED.get_nonce(k, sN)
    else:
        k("v_readfirstlane_b32 s4, v106\nv_readfirstlane_b32 s5, v107")
        k(f"s_or_b32 s6, s4, s5\ns_cmp_eq_u32 s6, 0\ns_cselect_b32 s{sN}, s{sN}, s4\ns_cselect_b32 s{sN+1}, s{sN+1}, s5")
        lq = k.newlabel("nq")
        k(f"s_or_b32 s4, s{sQ}, s{sC}\ns_cmp_lg_u32 s4, 0\ns_cbranch_scc1 {lq}")
        k(f"v_mov_b32 v108, s{sN}\nv_mov_b32 v109, s{sN+1}\nv_mov_b32 v110, {WS_NONCE}")
        k(f"buffer_store_dwordx2 v[108:109], v110, {s(sWS,4)}, 0 offen")
        k.label(lq)
    def cmad(d, lam, a_, b_):
        k(f"v_pk_fma_f32 v[64:65], {v(lam,2)}, {v(a_,2)}, {v(b_,2)} op_sel_hi:[0,1,1]")
        k(f"v_pk_fma_f32 {v(d,2)}, {v(lam,2)}, {v(a_,2)}, v[64:65] op_sel:[1,1,0] op_sel_hi:[1,0,1] neg_lo:[1,0,0]")
    k(f"v_mov_b32 v58, {L_CNT}")
    A = 68
    k(f"v_mov_b32 v{A+2}, s{sN}\nv_mov_b32 v{A+3}, s{sN+1}")
    k(f"v_lshlrev_b32 v66, 4, v{vP}\ns_mul_i32 s5, s{sC}, 10240\ns_add_u32 s5, s5, {WS_E}")
    if t.typ == "A":
        k("v_and_b32 v67, 63, v0\nv_cmp_gt_u32 vcc, 16, v67\nv_mov_b32 v67, 0x7fffffff\nv_cndmask_b32 v67, v67, v66, vcc")
    else: k("v_mov_b32 v67, v66")
    lds_wait(k, 58, 59, 4, 4, sleep=0)
    P.stamp()
    E = 72
    for sg in range(16): k(f"ds_read_b64 {v(E+2*sg,2)}, v30 offset:{512*sg}")
    def cmad2(d, lam, a_, b_):
        return [f"v_pk_fma_f32 {v(d,2)}, {v(lam,2)}, {v(a_,2)}, {v(b_,2)} op_sel_hi:[0,1,1]",
                f"v_pk_fma_f32 {v(d,2)}, {v(lam,2)}, {v(a_,2)}, {v(d,2)} op_sel:[1,1,0] op_sel_hi:[1,0,1] neg_lo:[1,0,0]"]
    src = [E + 2*i for i in range(16)]; base = 104
    for lv, lam in enumerate((L8, 32, 34, 36)):
        dst = [base + 2*i for i in range(len(src)//2)] if lv < 3 else [A]
        ins = [cmad2(dst[i], lam, src[2*i], src[2*i+1]) for i in range(len(dst))]
        if lv == 0:
            for i in range(8):
                k(f"s_waitcnt lgkmcnt({14 - 2*i})"); k(ins[i][0])
                if i: k(ins[i-1][1])
            k(ins[7][1])
        else:
            for x in ins: k(x[0])
            for x in ins: k(x[1])
        src = dst; base += 16
    k(f"buffer_store_dwordx4 {v(A,4)}, v67, {s(sWS,4)}, s5 offen sc1")
    P.stamp()
    B0 = 104
    l1, l2, ld = k.newlabel("poll"), k.newlabel("chk"), k.newlabel("lbdone")
    k("v_mov_b32 v56, 0\nv_mov_b32 v57, 0\ns_mov_b32 s5, 0\ns_mov_b32 s6, 0\ns_mov_b32 s63, 0")
    k(f"s_lshl_b32 s7, 1, s{sC}\ns_sub_u32 s7, s7, 1")
    k.label(l1)
    for cc in range(15):
        sk = k.newlabel("have")
        k(f"s_cmp_le_u32 s{sC}, {cc}\ns_cbranch_scc1 {l2}\ns_bitcmp1_b32 s6, {cc}\ns_cbranch_scc1 {sk}")
        k(f"s_mov_b32 s4, {WS_E + cc*10240}\nbuffer_load_dwordx4 {v(B0+4*cc,4)}, v66, {s(sWS,4)}, s4 offen sc1")
        k.label(sk)
    k.label(l2)
    lp_ = k.newlabel("pdone")
    k(f"s_cmp_lg_u32 s5, 0\ns_cbranch_scc1 {lp_}\ns_mov_b32 s5, 1")
    for sg in range(1, 16):
        if sg > 1: cmad(E + 2*(sg-1), L8, E + 2*(sg-2), E + 2*(sg-1))
        k(f"ds_write_b64 v31, {v(E+2*(sg-1),2)} offset:{512*sg}")
    k.label(lp_)
    l4 = k.newlabel("ok")
    k(f"s_cmp_eq_u32 s7, 0\ns_cbranch_scc1 {l4}")
    k("s_waitcnt vmcnt(0)")
    l3 = k.newlabel("chkd")
    for cc in range(15):
        k(f"s_cmp_le_u32 s{sC}, {cc}\ns_cbranch_scc1 {l3}")
        k(f"v_cmp_ne_u64 vcc, s[{sN}:{sN+1}], {v(B0+4*cc+2,2)}\ns_cmp_eq_u64 vcc, 0\ns_cselect_b32 s4, {1 << cc}, 0\ns_or_b32 s6, s6, s4")
    k.label(l3)
    k(f"s_add_u32 s63, s63, 1\ns_cmp_ge_u32 s63, 400000\ns_cbranch_scc1 {l4}")
    k(f"s_cmp_eq_u32 s6, s7\ns_cbranch_scc0 {l1}")
    k.label(l4)
    P.stamp()
    for cc in range(15):
        k(f"s_cmp_le_u32 s{sC}, {cc}\ns_cbranch_scc1 {ld}")
        cmad(56, L128, 56, B0 + 4*cc)
    k.label(ld)
    P.stamp()
    k("ds_write_b64 v62, v[56:57]")
    k(f"v_mov_b32 v58, {L_CNT + 8}\nv_mov_b32 v59, 1")
    k("s_waitcnt lgkmcnt(0)")
    lds_signal(k, 58, 59)

def gen_side(k, name):
    sWS, sA, sB_, sLR, sLI, sLD = 8, 12, 16, 20, 32, 36
    sJob, sT0, sT1, sK, sNT = 44, 45, 46, 47, 48
    lw, lg, ln, done = f"{name}_sideW", f"{name}_sideG", f"{name}_sideN", (f"{name}_sidedone" if FUSED else f"{name}_fin")
    k(f"s_load_dwordx2 s[4:5], s[0:1], {A_WS}")
    if FUSED: FUSED.side_job_id(k, sJob)
    else: k(f"s_lshl_b32 s{sJob}, s2, 1\ns_add_u32 s{sJob}, s{sJob}, s{sW}\ns_sub_u32 s{sJob}, s{sJob}, 5")
    k("v_and_b32 v2, 63, v0\nv_and_b32 v3, 15, v0\nv_bfe_u32 v4, v0, 4, 2\nv_lshlrev_b32 v5, 4, v2")
    k("s_waitcnt lgkmcnt(0)"); srd(k, sWS, 4, WS_SIZE)
    k(f"s_cmp_eq_u32 s{sW}, 7\ns_cbranch_scc1 {lg}")
    k(f"s_cmp_ge_u32 s{sJob}, 320\ns_cbranch_scc1 {lw}")
    k(f"s_load_dwordx4 s[4:7], s[0:1], {A_CRE}\ns_load_dwordx4 s[52:55], s[0:1], {A_LRE}\ns_load_dwordx2 s[50:51], s[0:1], {A_LOGDT}")
    k(f"s_mul_i32 s{sT0}, s{sJob}, 1639\ns_lshr_b32 s{sT0}, s{sT0}, 16\ns_mul_i32 s{sK}, s{sT0}, 40\ns_sub_u32 s{sK}, s{sJob}, s{sK}\ns_mul_i32 s{sNT}, s{sT0}, 5")
    k("s_waitcnt lgkmcnt(0)")
    srd(k, sA, 4, 819200); srd(k, sB_, 6, 819200); srd(k, sLR, 52, 1280); srd(k, sLI, 54, 1280); srd(k, sLD, 50, 1280)
    k(f"s_lshl_b32 s{sT0}, s{sK}, 5\nv_lshl_add_u32 v6, v3, 1, s{sT0}")
    load_lam_inputs(k, 6, 7, 8, 9, sLR, sLI, sLD)
    k(f"v_mul_u32_u24 v10, 1280, v3\nv_and_b32 v11, 1, v4\nv_lshl_add_u32 v10, v11, 4, v10")
    k(f"s_mul_i32 s{sT1}, s{sNT}, {16*1280}\ns_add_u32 s{sT1}, s{sT1}, s{sT0}")
    for j in range(5):
        k(f"s_add_u32 s{sT0}, s{sT1}, {j*16*1280}")
        k(f"buffer_load_dwordx4 {v(32+8*j,4)}, v10, {s(sA,4)}, s{sT0} offen\nbuffer_load_dwordx4 {v(36+8*j,4)}, v10, {s(sB_,4)}, s{sT0} offen")
    loader_tail(k, 13)
    k("s_waitcnt vmcnt(0)")
    for x in (7, 8, 9): k(f"v_lshlrev_b32 v{x}, 16, v{x}")
    lam_calc(k, 7, 8, 9, 12, 13, 14, 15)
    k("v_add_f32 v12, -1.0, v12\nv_mul_f32 v14, v7, v7\nv_fmac_f32 v14, v8, v8\nv_rcp_f32 v14, v14")
    k("v_mul_f32 v16, v12, v7\nv_fmac_f32 v16, v13, v8\nv_mul_f32 v17, v13, v7\nv_fma_f32 v17, -v12, v8, v17")
    k("v_add_f32 v14, v14, v14\nv_mul_f32 v16, v16, v14\nv_mul_f32 v17, v17, v14")
    k(f"s_sub_u32 s{sT0}, s{sW}, 5\ns_lshl_b32 s{sT0}, s{sT0}, 7\ns_add_u32 s{sT0}, s{sT0}, {L_COEF}")
    k(f"v_lshl_add_u32 v18, v3, 3, s{sT0}\nds_write_b64 v18, v[16:17]")
    k(f"v_lshl_add_u32 v18, v11, 6, s{sT0}\ns_waitcnt lgkmcnt(0)")
    CF_ = 80
    for j in range(4): k(f"ds_read_b128 {v(CF_+4*j,4)}, v18 offset:{16*j}")
    k("v_cmp_gt_u32 vcc, 2, v4")
    k("s_waitcnt lgkmcnt(0)")
    for c in range(8):
        cr, ci = CF_ + 2*c, CF_ + 1 + 2*c
        k(f"v_sub_f32 v20, 0, v{ci}\nv_sub_f32 v21, 0, v{cr}\nv_cndmask_b32 v{cr}, v20, v{cr}, vcc\nv_cndmask_b32 v{ci}, v21, v20, vcc")
    k(f"s_mul_i32 s{sT0}, s{sNT}, 40\ns_add_u32 s{sT0}, s{sT0}, s{sK}\ns_lshl_b32 s{sT0}, s{sT0}, 10\ns_add_u32 s{sT0}, s{sT0}, {WS_CF}")
    for j in range(5):
        for c in range(8):
            re, im = 32 + 8*j + (c >> 1), 36 + 8*j + (c >> 1)
            if c & 1: k(f"v_and_b32 v20, 0xffff0000, v{re}\nv_and_b32 v21, 0xffff0000, v{im}")
            else: k(f"v_lshlrev_b32 v20, 16, v{re}\nv_lshlrev_b32 v21, 16, v{im}")
            k(f"v_mul_f32 v{100+c}, v{CF_+2*c}, v20\nv_fmac_f32 v{100+c}, v{CF_+1+2*c}, v21")
        o = 108 + 4*(j & 1)
        for c in range(4): k(f"v_cvt_pk_bf16_f32 v{o+c}, v{100+2*c}, v{101+2*c}")
        k(f"s_add_u32 s{sT1}, s{sT0}, {j*40960}\nbuffer_store_dwordx4 {v(o,4)}, v5, {s(sWS,4)}, s{sT1} offen{WT}")
    k(f"s_branch {done}")
    k.label(lw)
    k(f"s_cmp_ge_u32 s{sJob}, 480\ns_cbranch_scc1 {ln}")
    k(f"s_load_dwordx2 s[4:5], s[0:1], {A_WO}")
    k(f"s_sub_u32 s{sJob}, s{sJob}, 320\ns_mul_i32 s{sT0}, s{sJob}, 3277\ns_lshr_b32 s{sT0}, s{sT0}, 16\ns_mul_i32 s{sK}, s{sT0}, 20\ns_sub_u32 s{sK}, s{sJob}, s{sK}\ns_mul_i32 s{sNT}, s{sT0}, 5")
    k("s_waitcnt lgkmcnt(0)"); srd(k, sA, 4, 819200)
    k(f"s_lshr_b32 s{sT0}, s{sK}, 1\ns_mul_i32 s{sT0}, s{sT0}, 80\ns_and_b32 s{sT1}, s{sK}, 1\ns_lshl_b32 s{sT1}, s{sT1}, 3\ns_add_u32 s{sT0}, s{sT0}, s{sT1}")
    k(f"s_sub_u32 s{sT1}, s{sK}, 16\ns_mul_i32 s{sT1}, s{sT1}, 160\ns_add_u32 s{sT1}, s{sT1}, 16")
    k(f"s_cmp_lt_u32 s{sK}, 16\ns_cselect_b32 s{sT0}, s{sT0}, s{sT1}\ns_cselect_b32 s49, 4, 80")
    k(f"v_mul_u32_u24 v10, {20*1280}, v4\nv_lshl_add_u32 v10, v3, 1, v10")
    k(f"s_mul_i32 s{sT0}, s{sT0}, 1280\ns_lshl_b32 s{sT1}, s{sNT}, 5\ns_add_u32 s{sT0}, s{sT0}, s{sT1}\ns_mul_i32 s49, s49, 1280")
    for t4 in range(5):
        for j in range(8):
            d = 32 + 8*t4 + j
            if j < 4: k(f"s_add_u32 s{sT1}, s{sT0}, {j*1280 + t4*32}")
            else: k(f"s_add_u32 s{sT1}, s{sT0}, s49\ns_add_u32 s{sT1}, s{sT1}, {(j-4)*1280 + t4*32}")
            k(f"buffer_load_ushort v{d}, v10, {s(sA,4)}, s{sT1} offen")
    k(f"s_mul_i32 s{sT0}, s{sNT}, 20\ns_add_u32 s{sT0}, s{sT0}, s{sK}\ns_lshl_b32 s{sT0}, s{sT0}, 10\ns_add_u32 s{sT0}, s{sT0}, {WS_WF}")
    loader_tail(k, 40)
    k("s_waitcnt vmcnt(0)")
    for t4 in range(5):
        for c in range(4): k(f"v_lshl_or_b32 v{80+4*t4+c}, v{33+8*t4+2*c}, 16, v{32+8*t4+2*c}")
        k(f"s_add_u32 s{sT1}, s{sT0}, {t4*20480}\nbuffer_store_dwordx4 {v(80+4*t4,4)}, v5, {s(sWS,4)}, s{sT1} offen{WT}")
    k(f"s_branch {done}")
    k.label(lg)
    k(f"s_load_dwordx2 s[4:5], s[0:1], {A_X}\ns_load_dwordx2 s[6:7], s[0:1], {A_GATE}")
    k(f"s_lshl_b32 s{sJob}, s{sC}, 4\ns_add_u32 s{sJob}, s{sJob}, s{sQ}\ns_mul_i32 s{sT0}, s{sJob}, {8*1280}")
    k("s_waitcnt lgkmcnt(0)"); srd(k, sA, 4, 2621440); srd(k, sB_, 6, 1280)
    k("v_lshrrev_b32 v6, 3, v2\nv_and_b32 v7, 7, v2\nv_lshlrev_b32 v11, 4, v7\nv_mul_u32_u24 v10, 1280, v6\nv_add_u32 v10, v10, v11")
    for c in range(10):
        k(f"buffer_load_dwordx4 {v(32+4*c,4)}, v10, {s(sA,4)}, s{sT0} offen offset:{128*c}")
        k(f"buffer_load_dwordx4 {v(72+4*c,4)}, v11, {s(sB_,4)}, 0 offen offset:{128*c}")
    loader_tail(k, 20)
    k("v_mov_b32 v12, 0\nv_mov_b32 v13, 0\ns_waitcnt vmcnt(0)")
    for r in range(40):
        k(f"v_lshlrev_b32 v14, 16, v{32+r}\nv_lshlrev_b32 v15, 16, v{72+r}\nv_fmac_f32 v12, v14, v15")
        k(f"v_and_b32 v14, 0xffff0000, v{32+r}\nv_and_b32 v15, 0xffff0000, v{72+r}\nv_fmac_f32 v13, v14, v15")
    k("v_add_f32 v12, v12, v13")
    k("v_add_f32_dpp v12, v12, v12 quad_perm:[1,0,3,2] row_mask:0xf bank_mask:0xf")
    k("v_add_f32_dpp v12, v12, v12 quad_perm:[2,3,0,1] row_mask:0xf bank_mask:0xf")
    k("v_add_f32_dpp v12, v12, v12 row_half_mirror row_mask:0xf bank_mask:0xf")
    k(f"v_mul_f32 v12, {LOG2E:#x}, v12\nv_exp_f32 v12, -v12\nv_add_f32 v12, 1.0, v12\nv_rcp_f32 v12, v12")
    k(f"s_lshl_b32 s{sT0}, s{sJob}, 7\ns_add_u32 s{sT0}, s{sT0}, {WS_G}")
    k("v_lshlrev_b32 v13, 2, v6\nv_mov_b32 v14, 0x7fffffff\nv_cmp_eq_u32 vcc, 0, v7\nv_cndmask_b32 v13, v14, v13, vcc")
    k(f"buffer_store_dword v12, v13, {s(sWS,4)}, s{sT0} offen{WT}")
    if CODE_PF and NEXT: code_prefetch(k, NEXT, NEXT + "_end", True, 20, 52, 2)
    k(f"s_branch {done}")
    k.label(ln)
    loader_tail(k, 0)
    k(f"s_branch {done}")
    if FUSED:
        k.label(done)
        FUSED.side_done(k, name)

def gen_k1(name="k1_kernel", prof=False, stop=None, rot="T2", code_pf=False, hprof=False, exp=None, wt="", next_kernel=None):
    global WT, CODE_PF, NEXT
    WT = (" " + wt) if wt else ""
    CODE_PF, NEXT = code_pf, next_kernel
    k = Kern(name, nv=256, na=0)
    P = Prof(k, prof, base=64)
    k(f"s_cmp_ge_u32 s2, 256\ns_cbranch_scc1 {name}_end")
    P.start()
    P.stamp()
    if hprof: k("s_memrealtime s[96:97]")
    decode(k, rot)
    tA, tB = T("A"), T("B")
    k(f"s_and_b32 s4, s{sQ}, 1\ns_cmp_ge_u32 s{sW}, 4\ns_cbranch_scc1 {name}_loaders")
    k(f"s_cmp_eq_u32 s4, 0\ns_cbranch_scc1 {name}_cpA\ns_branch {name}_cpB")
    k.label(f"{name}_loaders")
    k(f"s_cmp_eq_u32 s4, 0\ns_cbranch_scc0 {name}_ldB")
    n0 = P.n
    for t in (tA, tB):
        P.n = n0
        gen_loader(k, t, name, P, exp)
        if stop == "acc":
            loader_tail(k, 0)
            k(f"s_branch {name}_end"); continue
        k(f"s_cmp_eq_u32 s{sW}, 4\ns_cbranch_scc0 {name}_side")
        k("s_setprio 3")
        gen_helper_early(k, t)
        k("s_waitcnt vmcnt(11)\ns_barrier")
        gen_helper_tables(k, t)
        k("s_waitcnt vmcnt(1)\ns_barrier\ns_barrier")
        P.stamp()
        gen_helper(k, t, name, P)
        k(f"s_branch {name}_fin")
    if stop != "acc":
        k.label(f"{name}_side")
        gen_side(k, name)
    for t in (tA, tB):
        P.n = n0
        gen_compute(k, t, name, P, stop, exp)
    k.label(f"{name}_fin")
    if prof:
        P.n = 7
        k(f"s_load_dwordx2 s[4:5], s[0:1], {A_WS}\ns_waitcnt vmcnt(0) lgkmcnt(0)")
        srd(k, 8, 4, 0x4000000)
        P.stamp()
        P.flush(8, sW, 250, 62)
    if hprof:
        k(f"s_load_dwordx2 s[4:5], s[0:1], {A_WS}\ns_waitcnt vmcnt(0) lgkmcnt(0)\ns_memrealtime s[98:99]\ns_waitcnt lgkmcnt(0)")
        srd(k, 8, 4, WS_SIZE)
        k(f"s_lshl_b32 s4, s2, 3\ns_add_u32 s4, s4, s{sW}\ns_lshl_b32 s4, s4, 3\ns_add_u32 s4, s4, 0x1180000")
        k("v_mov_b32 v250, s96\nv_mov_b32 v251, s98\nv_mov_b32 v252, 0\nbuffer_store_dwordx2 v[250:251], v252, s[8:11], s4 offen")
    k.label(f"{name}_end")
    k("s_endpgm")
    return k

if __name__ == "__main__":
    import sys
    sys.path.insert(0, "exp")
    from build import build
    for tag, kw in (("acc", dict(stop="acc")), ("full", dict()), ("prof", dict(prof=True)), ("nomfma", dict(prof=True, exp="nomfma")), ("nodma", dict(prof=True, exp="nodma")),
                    ("rN", dict(prof=True, rot="N")), ("rA", dict(prof=True, rot="A")), ("rT4", dict(prof=True, rot="T4"))):
        k = gen_k1(**kw)
        open(f"k1_{tag}.s", "w").write(module([f"@launch kernel={k.name} grid=(256,1,1) block=(512,1,1) lds={LDS_K1}"], [k]))
        build(f"k1_{tag}.s", f"k1_{tag}.co", k.name, check=(tag == "full"))
        print(tag, "built, pads:", k.npad, "lines:", len(k.lines))
```

```python
from ag import *
from layout import *

WSBASE = 0
def srd(k, r, lo, size):
    if size == WS_SIZE and WSBASE:
        k(f"s_add_u32 s{r}, s{lo}, {WSBASE}\ns_addc_u32 s{r+1}, s{lo+1}, 0\ns_and_b32 s{r+1}, s{r+1}, 0xffff\ns_mov_b32 s{r+2}, {size}\ns_mov_b32 s{r+3}, 0x20000")
        return
    k(f"s_mov_b32 s{r}, s{lo}\ns_and_b32 s{r+1}, s{lo+1}, 0xffff\ns_mov_b32 s{r+2}, {size}\ns_mov_b32 s{r+3}, 0x20000")

PROF_OFF = 0x1180000
class Prof:
    def __init__(self, k, on, base=64): self.k, self.on, self.n, self.base = k, on, 0, base
    def start(self):
        if self.on: self.k("s_memrealtime s[96:97]")
    def stamp(self):
        if not self.on: return
        r = self.base + 2*self.n; self.n += 1
        self.k(f"s_memtime s[{r}:{r+1}]")
    def flush(self, sWS, sW, tmpv, tmps):
        if not self.on: return
        k = self.k
        k("s_waitcnt lgkmcnt(0)")
        k(f"s_lshl_b32 s{tmps}, s2, 3\ns_add_u32 s{tmps}, s{tmps}, s{sW}\ns_lshl_b32 s{tmps}, s{tmps}, 6\ns_add_u32 s{tmps}, s{tmps}, {PROF_OFF}")
        k(f"s_memrealtime s[{self.base + 2*self.n}:{self.base + 2*self.n + 1}]\ns_waitcnt lgkmcnt(0)")
        k(f"v_mov_b32 v{tmpv+1}, 0")
        for i in range(self.n + 1):
            k(f"v_mov_b32 v{tmpv}, s{self.base + 2*i}\nbuffer_store_dword v{tmpv}, v{tmpv+1}, {s(sWS,4)}, s{tmps} offen offset:{4*i}")
        k(f"v_mov_b32 v{tmpv}, s96\nbuffer_store_dword v{tmpv}, v{tmpv+1}, {s(sWS,4)}, s{tmps} offen offset:60")

def lds_wait(k, addr_v, tmp_v, target, tmps, sleep=1):
    l = k.newlabel("spin"); d = k.newlabel("spun")
    k.label(l)
    k(f"ds_read_b32 v{tmp_v}, v{addr_v}\ns_waitcnt lgkmcnt(0)\nv_readfirstlane_b32 s{tmps}, v{tmp_v}")
    k(f"s_cmp_ge_u32 s{tmps}, {target}\ns_cbranch_scc1 {d}")
    if sleep: k(f"s_sleep {sleep}")
    k(f"s_branch {l}")
    k.label(d)

K3_LDS = 81920 + 4096
L3_KV, L3_ZERO, L3_CNT = 81920, 81920 + 1792, 81920 + 3584

def gen_k3(name="k3_kernel", ND=3, rot=True, prof=False, hprof=False, xmap="4x8", nohelp=False, contig=False, nogemm=False, GO=3, wt="", exp=None):
    k = Kern(name, nv=128, na=ND*36) if exp != "vbuf" else Kern(name, nv=128 + ND*36, na=0)
    k.lds = K3_LDS
    sWS, sOUT, sX, sDS = 8, 12, 16, 20
    sW, sB, sJ, sH, sRho = 26, 27, 28, 29, 30
    sS, sC = 32, 36
    sO, sF = 44, 48
    sK, sT0, sT1, sT2, sKlim = 56, 57, 58, 59, 60
    ACC = 0
    vL16, vK0, vK1, vLane, vN, vG4, vTid = 80, 81, 82, 83, 84, 85, 87
    vG = 88
    vT = 92
    def buf(i, f): return a((i % ND)*36 + f*4, 4) if exp != "vbuf" else v(128 + (i % ND)*36 + f*4, 4)
    P = Prof(k, prof)
    k(f"s_cmp_ge_u32 s2, 256\ns_cbranch_scc1 {name}_end")
    P.start(); P.stamp()
    k(f"s_load_dwordx2 s[4:5], s[0:1], {A_WS}\ns_load_dwordx2 s[6:7], s[0:1], {A_OUT}")
    k(f"s_load_dwordx2 s[40:41], s[0:1], {A_X}\ns_load_dwordx2 s[42:43], s[0:1], {A_DSKIP}")
    k(f"v_lshrrev_b32 v{vT}, 6, v0\nv_and_b32 v{vLane}, 63, v0\nv_and_b32 v{vTid}, 255, v0")
    k(f"v_readfirstlane_b32 s{sW}, v{vT}")
    k(f"v_lshlrev_b32 v{vL16}, 4, v{vLane}\nv_and_b32 v{vN}, 15, v{vLane}\nv_lshrrev_b32 v{vG4}, 4, v{vLane}")
    k(f"s_and_b32 s61, s2, 7\ns_lshr_b32 s{sT0}, s2, 3")
    if xmap == "4x8":
        k(f"s_lshr_b32 s{sT1}, s{sT0}, 3\ns_and_b32 s{sJ}, s{sT0}, 7\ns_lshl_b32 s{sB}, s61, 2\ns_add_u32 s{sB}, s{sB}, s{sT1}")
        k(f"s_xor_b32 s31, s{sT1}, s{sJ}")
    else:
        k(f"s_and_b32 s{sT1}, s{sT0}, 7\ns_lshr_b32 s{sB}, s61, 1\ns_lshl_b32 s{sB}, s{sB}, 3\ns_add_u32 s{sB}, s{sB}, s{sT1}")
        k(f"s_lshr_b32 s{sT2}, s{sT0}, 3\ns_and_b32 s{sJ}, s61, 1\ns_lshl_b32 s{sJ}, s{sJ}, 2\ns_add_u32 s{sJ}, s{sJ}, s{sT2}")
        k(f"s_xor_b32 s31, s{sT1}, s{sT2}")
    k(f"s_and_b32 s53, s31, 1")
    k(f"s_and_b32 s{sH}, s{sT0}, 3\ns_lshl_b32 s61, s61, 2\ns_add_u32 s{sH}, s{sH}, s61\ns_lshr_b32 s{sRho}, s{sT0}, 2")
    k(f"s_cmp_ge_u32 s{sW}, 4\ns_cbranch_scc1 {name}_helper")

    k(f"s_mul_i32 s{sT0}, s{sB}, {4*40960}")
    for tj in range(4): k(f"s_add_u32 s{sS+tj}, s{sT0}, {WS_S + tj*40960}")
    k(f"s_mul_i32 s{sT0}, s{sJ}, {5*40960}")
    for nt in range(4): k(f"s_add_u32 s{sC+nt}, s{sT0}, {WS_CF + nt*40960}")
    k(f"s_add_u32 s61, s{sT0}, {WS_CF + 4*40960}")
    if rot: k(f"s_mul_i32 s{sT0}, s53, 5")
    else: k(f"s_mov_b32 s{sT0}, 0")
    k(f"s_lshl_b32 s{sT0}, s{sT0}, 2\ns_add_u32 s{sT0}, s{sT0}, s{sW}\ns_lshl_b32 s{sK}, s{sT0}, 10")
    k(f"s_lshl_b32 s{sKlim}, s{sW}, 10\ns_add_u32 s{sKlim}, s{sKlim}, 40960")
    if contig:
        k(f"s_lshl_b32 s{sT0}, s{sB}, 2\ns_add_u32 s{sT0}, s{sT0}, s{sW}\ns_mul_i32 s{sT0}, s{sT0}, 40960")
        for tj in range(4): k(f"s_add_u32 s{sS+tj}, s{sT0}, {WS_S + tj*1024}")
        k(f"s_lshl_b32 s{sT0}, s{sJ}, 2\ns_add_u32 s{sT0}, s{sT0}, s{sW}\ns_mul_i32 s{sT0}, s{sT0}, 51200")
        for nt in range(4): k(f"s_add_u32 s{sC+nt}, s{sT0}, {WS_CF + nt*1024}")
        k(f"s_add_u32 s61, s{sT0}, {WS_CF + 4*1024}")
        k(f"s_mul_i32 s{sK}, s53, {5*4096}\ns_mov_b32 s{sKlim}, 40960")
    k("s_waitcnt lgkmcnt(0)")
    srd(k, sWS, 4, WS_SIZE); srd(k, sX, 40, 2621440); srd(k, sDS, 42, 1280); srd(k, sOUT, 6, 5242880)
    steps = [("S", i) for i in range(10)] + [("O", i) for i in range(5)]
    def issue(i):
        kind, n = steps[i]
        vK = vK0 if i % 2 == 0 else vK1
        if kind == "O" and n == 0: k(f"s_lshl_b32 s{sK}, s{sW}, 10")
        k(f"v_add_u32 v{vK}, s{sK}, v{vL16}")
        tb, wb, fl = (sS, sC, "") if kind == "S" else (sO, sF, " sc1")
        if kind == "O" and n == 4:
            k(f"v_lshlrev_b32 v{vT+2}, 3, v{vLane}\nv_add_u32 v{vT+2}, s{sK}, v{vT+2}")
            for f in range(4):
                b0 = (i % ND)*36 + f*4
                if exp == "vbuf":
                    k(f"buffer_load_dwordx2 {v(128+b0,2)}, v{vT+2}, {s(sWS,4)}, s{tb+f} offen{fl}\nbuffer_load_dwordx2 {v(128+b0+2,2)}, v{vT+2}, {s(sWS,4)}, s{tb+f} offen offset:512{fl}")
                    continue
                k(f"buffer_load_dwordx2 {a(b0,2)}, v{vT+2}, {s(sWS,4)}, s{tb+f} offen{fl}\nbuffer_load_dwordx2 {a(b0+2,2)}, v{vT+2}, {s(sWS,4)}, s{tb+f} offen offset:512{fl}")
        else:
            for f in range(4): k(f"buffer_load_dwordx4 {buf(i,f)}, v{vK}, {s(sWS,4)}, s{tb+f} offen{fl}")
        for f in range(5): k(f"buffer_load_dwordx4 {buf(i,4+f)}, v{vK}, {s(sWS,4)}, s{wb+f} offen")
        k(f"s_add_u32 s{sK}, s{sK}, 4096")
        if kind == "S":
            k(f"s_sub_u32 s{sT0}, s{sK}, 40960\ns_cmp_ge_u32 s{sK}, s{sKlim}\ns_cselect_b32 s{sK}, s{sT0}, s{sK}")
    k(f"s_mov_b32 s{sC+4}, s61")
    k("s_barrier")
    if nogemm: k(f"s_branch {name}_fin")
    issue(0)
    vTok = 86
    k(f"v_lshrrev_b32 v{vTok}, 2, v{vN}\nv_lshlrev_b32 v{vTok}, 3, v{vTok}\nv_and_b32 v{vT}, 1, v{vN}\nv_lshl_add_u32 v{vTok}, v{vT}, 2, v{vTok}")
    k(f"v_bfe_u32 v{vT}, v{vN}, 1, 1\nv_add_u32 v{vTok}, v{vTok}, v{vT}")
    k(f"s_lshr_b32 s{sT0}, s{sW}, 1\ns_lshl_b32 s{sT0}, s{sT0}, 5\ns_and_b32 s{sT1}, s{sW}, 1\ns_lshl_b32 s{sT1}, s{sT1}, 1\ns_add_u32 s62, s{sT0}, s{sT1}\ns_lshl_b32 s{sT0}, s{sB}, 6\ns_add_u32 s62, s62, s{sT0}")
    XV, DV = vT, vT + 10
    k(f"s_mul_i32 s{sT0}, s62, 1280\ns_mul_i32 s{sT1}, s{sJ}, 160\ns_add_u32 s{sT0}, s{sT0}, s{sT1}")
    k(f"v_mul_u32_u24 v{vT+20}, 1280, v{vTok}\nv_lshl_add_u32 v{vT+20}, v{vG4}, 3, v{vT+20}\nv_lshlrev_b32 v{vT+21}, 3, v{vG4}")
    for nt in range(5): k(f"buffer_load_dwordx2 {v(XV+2*nt,2)}, v{vT+20}, {s(sX,4)}, s{sT0} offen offset:{nt*32}")
    for nt in range(5): k(f"buffer_load_dwordx2 {v(DV+2*nt,2)}, v{vT+21}, {s(sDS,4)}, s{sT1} offen offset:{nt*32}")
    k(f"s_lshl_b32 s{sT0}, s{sB}, 10\ns_add_u32 s{sT0}, s{sT0}, {WS_G}")
    k(f"v_lshrrev_b32 v{vT+22}, 3, v{vTok}\nv_lshlrev_b32 v{vT+22}, 7, v{vT+22}\nv_and_b32 v{vT+23}, 7, v{vTok}\nv_lshl_add_u32 v{vT+22}, v{vT+23}, 2, v{vT+22}")
    for tj in range(4): k(f"buffer_load_dword v{vG+tj}, v{vT+22}, {s(sWS,4)}, s{sT0} offen offset:{512*(tj >> 1) + 8*(tj & 1)}")
    for i in range(1, ND): issue(i)
    k(f"s_mul_i32 s{sT0}, s{sB}, {4*20480}")
    for tj in range(4): k(f"s_add_u32 s{sO+tj}, s{sT0}, {WS_O + tj*20480}")
    k(f"s_mul_i32 s{sT0}, s{sJ}, {5*20480}")
    for nt in range(5): k(f"s_add_u32 s{sF+nt}, s{sT0}, {WS_WF + nt*20480}")
    P.stamp()
    k(f"s_waitcnt vmcnt({(ND-1)*9 + 4})")
    for nt in range(5):
        for r in range(4):
            xr, dr = XV + 2*nt + (r >> 1), DV + 2*nt + (r >> 1)
            t0, t1 = vT + 24 + 2*(r & 1), vT + 25 + 2*(r & 1)
            if r & 1: k(f"v_and_b32 v{t0}, 0xffff0000, v{xr}\nv_and_b32 v{t1}, 0xffff0000, v{dr}")
            else: k(f"v_lshlrev_b32 v{t0}, 16, v{xr}\nv_lshlrev_b32 v{t1}, 16, v{dr}")
            k(f"v_mul_f32 v{ACC + nt*4 + r}, v{t0}, v{t1}")
    for tj in range(3, -1, -1):
        k(f"s_cmp_eq_u32 s{sW}, {tj}\ns_cselect_b64 vcc, -1, 0")
        for r in range(20):
            if tj == 0: k(f"v_cndmask_b32 v{ACC+r}, 0, v{ACC+r}, vcc")
            else: k(f"v_cndmask_b32 v{ACC+tj*20+r}, 0, v{ACC+r}, vcc")
    nloads = [13 if st == ("O", 4) else 9 for st in steps]
    outstanding_after = lambda i: sum(nloads[i+1:i+ND])
    for i in range(len(steps)):
        kind, n = steps[i]
        if kind == "O" and n == 0:
            P.stamp()
            for tj in range(4):
                for r in range(0, 20, 2):
                    k(f"v_pk_mul_f32 {v(ACC+tj*20+r,2)}, {v(ACC+tj*20+r,2)}, {v(vG + (tj & 2), 2)} op_sel:[0,{tj & 1}] op_sel_hi:[1,{tj & 1}]")
        k(f"s_waitcnt vmcnt({outstanding_after(i)})")
        for tj in range(4):
            for nt in range(5):
                d = v(ACC + (tj*5+nt)*4, 4)
                if exp != "nomfma": k(f"v_mfma_f32_16x16x32_bf16 {d}, {buf(i,4+nt)}, {buf(i,tj)}, {d}")
        if i == GO and not nohelp:
            lgo = k.newlabel("go")
            k(f"s_cmp_lg_u32 s{sW}, 0\ns_cbranch_scc1 {lgo}")
            k(f"v_mov_b32 v{vT}, {L3_CNT + 12}\nv_mov_b32 v{vT+1}, 1\nds_write_b32 v{vT}, v{vT+1}")
            k.label(lgo)
        j = i + ND
        if j < len(steps):
            if steps[j] == ("O", 0) and nohelp: P.stamp()
            if steps[j] == ("O", 0) and not nohelp:
                k(f"v_mov_b32 v{vT}, {L3_CNT + 8}")
                lds_wait(k, vT, vT + 1, 1, sT0)
                P.stamp()
            issue(j)
    P.stamp()
    k(f"v_mul_u32_u24 v{vT+2}, 2560, v{vTok}\nv_lshl_add_u32 v{vT+2}, v{vG4}, 4, v{vT+2}")
    k(f"s_mul_i32 s{sT0}, s62, 2560\ns_mul_i32 s{sT1}, s{sJ}, 320\ns_add_u32 s{sT0}, s{sT0}, s{sT1}")
    for w in range(4):
        nxt = f"{name}_red{w+1}"
        if w < 3: k(f"s_cmp_lg_u32 s{sW}, {w}\ns_cbranch_scc1 {nxt}")
        k(f"v_add_u32 v{vT}, 40960, v{vL16}")
        for tj in range(4):
            if tj == w: continue
            slot = (w - tj - 1) % 4
            for nt in range(5):
                off = tj*15360 + slot*5120 + nt*1024
                base, o2 = (vL16, off) if off < 40960 else (vT, off - 40960)
                k(f"ds_write_b128 v{base}, {v(ACC+(tj*5+nt)*4,4)} offset:{o2}")
        k("s_waitcnt lgkmcnt(0)\ns_barrier")
        others = [tj for tj in range(4) if tj != w]
        for slot in range(3):
            for nt in range(5):
                off = w*15360 + slot*5120 + nt*1024
                base, o2 = (vL16, off) if off < 40960 else (vT, off - 40960)
                k(f"ds_read_b128 {v(ACC+(others[slot]*5+nt)*4,4)}, v{base} offset:{o2}")
        for nt in range(5):
            if nt == 0: k("s_waitcnt lgkmcnt(0)")
            d = ACC + (w*5+nt)*4
            for h in (0, 2):
                a0, a1, a2 = (ACC + (others[sl]*5+nt)*4 + h for sl in range(3))
                k(f"v_pk_add_f32 {v(a0,2)}, {v(a0,2)}, {v(a1,2)}\nv_pk_add_f32 {v(d+h,2)}, {v(d+h,2)}, {v(a2,2)}\nv_pk_add_f32 {v(d+h,2)}, {v(d+h,2)}, {v(a0,2)}")
            k(f"buffer_store_dwordx4 {v(d,4)}, v{vT+2}, {s(sOUT,4)}, s{sT0} offen offset:{nt*64}{(' ' + wt) if wt else ''}")
        k(f"s_branch {name}_fin")
        if w < 3: k.label(nxt)

    k.label(f"{name}_helper")
    k(f"v_mov_b32 v64, 0\nv_mov_b32 v65, 0\nv_mov_b32 v66, 0\nv_mov_b32 v67, 0")
    k(f"v_lshlrev_b32 v68, 4, v{vTid}\nv_add_u32 v68, {L3_ZERO}, v68\nv_mov_b32 v69, {L3_CNT}\nv_cmp_gt_u32 vcc, 112, v{vTid}\nv_cndmask_b32 v68, v69, v68, vcc")
    k("ds_write_b128 v68, v[64:67]")
    k("s_setprio 3\ns_waitcnt lgkmcnt(0)")
    srd(k, sWS, 4, WS_SIZE)
    sV = 31
    if nohelp:
        k(f"s_barrier\ns_branch {name}_fin")
    k(f"s_sub_u32 s{sV}, s{sW}, 4")
    KV = vT
    PQ = 0
    k(f"v_lshlrev_b32 v{vK0}, 3, v{vTid}\nv_mov_b32 v{vK1}, 0x7fffffff\nv_cmp_gt_u32 vcc, 210, v{vTid}\nv_cndmask_b32 v{vK0}, v{vK1}, v{vK0}, vcc")
    k(f"s_lshl_b32 s{sT0}, s{sH}, 15\ns_add_u32 s{sT0}, s{sT0}, {WS_KVP}")
    for c in range(16):
        k(f"s_add_u32 s{sT1 + (c&1)}, s{sT0}, {c*2048}")
        k(f"buffer_load_dwordx2 {v(KV+2*c,2)}, v{vK0}, {s(sWS,4)}, s{sT1 + (c&1)} offen")
    k(f"s_lshl_b32 s{sT0}, s{sH}, 5\ns_lshl_b32 s{sT1}, s{sRho}, 2\ns_add_u32 s{sT0}, s{sT0}, s{sT1}\ns_add_u32 s{sT0}, s{sT0}, s{sV}")
    k(f"s_mul_i32 s{sT0}, s{sT0}, 5120\ns_add_u32 s{sT0}, s{sT0}, {WS_PQ}\ns_add_u32 s{sT1}, s{sT0}, 4096")
    for m in range(4): k(f"buffer_load_dwordx4 {v(PQ+4*m,4)}, v{vL16}, {s(sWS,4)}, s{sT0} offen offset:{m*1024}")
    k(f"buffer_load_dwordx4 {v(PQ+16,4)}, v{vL16}, {s(sWS,4)}, s{sT1} offen")
    vGo = 86
    k(f"s_lshl_b32 s{sT0}, s{sRho}, 2\ns_add_u32 s{sT0}, s{sT0}, s{sV}\ns_lshl_b32 s{sT0}, s{sT0}, 10\ns_add_u32 s{sT0}, s{sT0}, {WS_G}")
    k(f"v_lshrrev_b32 v62, 2, v{vN}\nv_lshlrev_b32 v62, 7, v62\nv_and_b32 v63, 1, v{vN}\nv_lshl_add_u32 v62, v63, 4, v62\nv_bfe_u32 v63, v{vN}, 1, 1\nv_lshl_add_u32 v62, v63, 2, v62")
    k(f"v_lshrrev_b32 v63, 1, v{vG4}\nv_lshl_add_u32 v62, v63, 9, v62\nv_and_b32 v63, 1, v{vG4}\nv_lshl_add_u32 v62, v63, 3, v62")
    k(f"buffer_load_dword v{vGo}, v62, {s(sWS,4)}, s{sT0} offen")
    k(f"v_mov_b32 v{vK1}, {WS_NONCE}\nbuffer_load_dwordx2 v[60:61], v{vK1}, {s(sWS,4)}, 0 offen")
    k("s_barrier")
    P.n = 1; P.stamp()
    k("s_waitcnt vmcnt(7)")
    k(f"v_lshlrev_b32 v124, 16, v{KV}\nv_and_b32 v125, 0xffff0000, v{KV}\nv_lshlrev_b32 v126, 16, v{KV+1}\nv_and_b32 v127, 0xffff0000, v{KV+1}")
    for c in range(1, 16):
        lo, hi = KV + 2*c, KV + 2*c + 1
        t = 70 + 4*(c & 1)
        k(f"v_lshlrev_b32 v{t}, 16, v{lo}\nv_and_b32 v{t+1}, 0xffff0000, v{lo}\nv_lshlrev_b32 v{t+2}, 16, v{hi}\nv_and_b32 v{t+3}, 0xffff0000, v{hi}")
        k(f"v_pk_add_f32 v[124:125], v[124:125], {v(t,2)}\nv_pk_add_f32 v[126:127], v[126:127], {v(t+2,2)}")
    k(f"v_cvt_pk_bf16_f32 v{KV}, v124, v125\nv_cvt_pk_bf16_f32 v{KV+1}, v126, v127")
    k(f"v_lshlrev_b32 v{vK1}, 3, v{vTid}\nv_add_u32 v{vK1}, {L3_KV}, v{vK1}\nv_mov_b32 v69, {L3_CNT + 16}\nv_cmp_gt_u32 vcc, 210, v{vTid}\nv_cndmask_b32 v{vK1}, v69, v{vK1}, vcc")
    k(f"ds_write_b64 v{vK1}, {v(KV,2)}")
    k("s_waitcnt lgkmcnt(0)")
    k(f"v_mov_b32 v70, {L3_CNT + 4}\nv_mov_b32 v71, 1\ns_mov_b64 s[62:63], exec\ns_mov_b64 exec, 1\nds_add_u32 v70, v71\ns_mov_b64 exec, s[62:63]")
    lds_wait(k, 70, 71, 4, sT0)
    P.stamp()
    vA = KV + 8
    k(f"v_lshrrev_b32 v{vK1}, 2, v{vN}\nv_and_b32 v{vA}, 3, v{vN}\nv_mul_u32_u24 v{vA}, 80, v{vA}\nv_add_u32 v{vA}, {L3_KV}, v{vA}")
    k(f"v_cmp_eq_u32 vcc, v{vK1}, v{vG4}\nv_mov_b32 v{vA+1}, {L3_ZERO}\nv_cndmask_b32 v{vA}, v{vA+1}, v{vA}, vcc")
    k(f"v_mov_b32 v{vA+2}, {L3_KV + 1600}\nv_cndmask_b32 v{vA+2}, v{vA+1}, v{vA+2}, vcc")
    AOP = KV + 12
    NUM = 20
    order = [(i, m) for i in range(6) for m in range(5)]
    def rd(n):
        i, m = order[n]
        if i < 5: k(f"ds_read_b128 {v(AOP + 4*(n % 4), 4)}, v{vA} offset:{320*i + 16*m}")
        else: k(f"ds_read_b128 {v(AOP + 4*(n % 4), 4)}, v{vA+2} offset:{16*m}")
    for n in range(3): rd(n)
    k("s_waitcnt vmcnt(2)")
    for n in range(30):
        if n + 3 < 30: rd(n + 3)
        k(f"s_waitcnt lgkmcnt({min(3, 29 - n)})")
        i, m = order[n]
        k(f"v_mfma_f32_16x16x32_bf16 {v(NUM+4*i,4)}, {v(AOP + 4*(n % 4), 4)}, {v(PQ+4*m,4)}, {'0' if m == 0 else v(NUM + 4*i, 4)}")
    k("s_waitcnt vmcnt(0)")
    DEN = NUM + 20
    k(f"v_add_f32 v{DEN}, 0x358637bd, v{DEN}\nv_rcp_f32 v{DEN}, v{DEN}\nv_sub_f32 v{vGo}, 1.0, v{vGo}\nv_mul_f32 v{DEN}, v{DEN}, v{vGo}")
    for d in range(0, 20, 2): k(f"v_pk_mul_f32 {v(NUM+d,2)}, {v(NUM+d,2)}, {v(DEN,2)} op_sel_hi:[1,0]")
    OP = 48
    for d in range(10): k(f"v_cvt_pk_bf16_f32 v{OP+d}, v{NUM+2*d}, v{NUM+2*d+1}")
    k(f"s_lshl_b32 s{sT0}, s{sRho}, 2\ns_add_u32 s{sT0}, s{sT0}, s{sV}\ns_mul_i32 s{sT0}, s{sT0}, {4*20480}")
    k(f"s_and_b32 s{sT1}, s{sH}, 3\ns_lshl_b32 s{sT1}, s{sT1}, 8\ns_add_u32 s{sT0}, s{sT0}, s{sT1}\ns_add_u32 s{sT0}, s{sT0}, {WS_O}")
    k(f"v_mul_u32_u24 v{vK1}, 20480, v{vG4}\nv_lshl_add_u32 v{vK1}, v{vN}, 4, v{vK1}")
    k(f"s_lshr_b32 s{sT1}, s{sH}, 2\ns_lshl_b32 s{sT2}, s{sT1}, 11\ns_add_u32 s{sT2}, s{sT2}, s{sT0}")
    k(f"buffer_store_dwordx4 {v(OP,4)}, v{vK1}, {s(sWS,4)}, s{sT2} offen sc1")
    k(f"buffer_store_dwordx4 {v(OP+4,4)}, v{vK1}, {s(sWS,4)}, s{sT2} offen offset:1024 sc1")
    k(f"s_and_b32 s{sT2}, s{sT1}, 1\ns_lshl_b32 s{sT2}, s{sT2}, 9\ns_lshr_b32 s{sT1}, s{sT1}, 1\ns_add_u32 s{sT1}, s{sT1}, 16\ns_lshl_b32 s{sT1}, s{sT1}, 10")
    k(f"s_add_u32 s{sT2}, s{sT2}, s{sT1}\ns_add_u32 s{sT2}, s{sT2}, s{sT0}\ns_and_b32 s{sT1}, s{sH}, 3\ns_lshl_b32 s{sT1}, s{sT1}, 7\ns_sub_u32 s{sT2}, s{sT2}, s{sT1}")
    k(f"v_mul_u32_u24 v{vK0}, 20480, v{vG4}\nv_lshl_add_u32 v{vK0}, v{vN}, 3, v{vK0}")
    k(f"buffer_store_dwordx2 {v(OP+8,2)}, v{vK0}, {s(sWS,4)}, s{sT2} offen sc1")
    k("s_waitcnt vmcnt(0)")
    P.stamp()
    k(f"v_mov_b32 v70, {L3_CNT}\nv_mov_b32 v71, 1")
    k("s_mov_b64 s[62:63], exec\ns_mov_b64 exec, 1\nds_add_rtn_u32 v72, v70, v71\ns_waitcnt lgkmcnt(0)\ns_mov_b64 exec, s[62:63]")
    k(f"v_readfirstlane_b32 s{sT0}, v72\ns_cmp_lg_u32 s{sT0}, 3\ns_cbranch_scc1 {name}_fin")
    k(f"s_lshl_b32 s{sT0}, s{sRho}, 12\ns_add_u32 s{sT0}, s{sT0}, {WS_OF}\ns_lshl_b32 s{sT1}, s{sH}, 7\ns_add_u32 s{sT1}, s{sT1}, s{sT0}")
    k(f"v_mov_b32 v62, v60\nv_mov_b32 v63, v61\nv_lshlrev_b32 v70, 4, v{vLane}\ns_mov_b64 s[62:63], exec\ns_mov_b64 exec, 0xff")
    k(f"buffer_store_dwordx4 v[60:63], v70, {s(sWS,4)}, s{sT1} offen sc1\ns_mov_b64 exec, s[62:63]")
    k(f"s_lshr_b32 s{sT0}, s{sB}, 2\ns_lshl_b32 s{sT0}, s{sT0}, 12\ns_add_u32 s{sT0}, s{sT0}, {WS_OF}")
    k(f"v_and_b32 v70, 31, v{vLane}\nv_lshlrev_b32 v70, 7, v70")
    l1, l2 = k.newlabel("poll"), k.newlabel("polled")
    P.stamp()
    if prof: k("s_mov_b32 s76, 0")
    if not nogemm:
        k(f"v_mov_b32 v74, {L3_CNT + 12}")
        lds_wait(k, 74, 75, 1, sT1, sleep=4)
    k.label(l1)
    if prof: k("s_add_u32 s76, s76, 1")
    k(f"buffer_load_dwordx2 v[72:73], v70, {s(sWS,4)}, s{sT0} offen sc1\ns_waitcnt vmcnt(0)")
    k(f"v_cmp_ne_u64 vcc, v[72:73], v[60:61]\ns_cmp_eq_u64 vcc, 0\ns_cbranch_scc1 {l2}\ns_sleep 8\ns_branch {l1}")
    k.label(l2)
    k(f"v_mov_b32 v70, {L3_CNT + 8}\nv_mov_b32 v71, 1\nds_write_b32 v70, v71\ns_waitcnt lgkmcnt(0)")
    P.stamp()
    if prof: k("s_mov_b32 s76, s76")
    k.label(f"{name}_fin")
    if prof:
        P.n = 7
        k("s_waitcnt vmcnt(0)")
        P.stamp()
        P.flush(sWS, sW, 120, sT0)
    k.label(f"{name}_end")
    k("s_endpgm")
    return k

if __name__ == "__main__":
    import sys
    sys.path.insert(0, "exp")
    from build import build
    for tag, kw in (("", {}), ("_p3", dict(ND=3, prof=True)), ("_p2", dict(ND=2, prof=True)), ("_nh2", dict(ND=2, prof=True, nohelp=True)), ("_nh3", dict(ND=3, prof=True, nohelp=True)), ("_nh2v", dict(ND=2, prof=True, nohelp=True, exp="vbuf")), ("_nh2n", dict(ND=2, prof=True, nohelp=True, exp="nomfma")), ("_nh3n", dict(ND=3, prof=True, nohelp=True, exp="nomfma")), ("_p2v", dict(ND=2, prof=True, exp="vbuf")), ("_ng", dict(ND=2, prof=True, nogemm=True))):
        k = gen_k3(**kw)
        open(f"k3{tag}.s", "w").write(module([f"@launch kernel={k.name} grid=(256,1,1) block=(512,1,1) lds={K3_LDS}"], [k]))
        build(f"k3{tag}.s", f"k3{tag}.co", k.name, check=(tag == ""))
        print(tag, "built, pads:", k.npad, "lines:", len(k.lines))
```

```python
from ag import *
from layout import *
import k1
from k1 import (lam_calc, L_COEF, LOG2E, T, decode, gen_loader, gen_helper_early, gen_helper_tables, gen_helper, gen_side, gen_compute, sW, sC, sHG, sQ,
                L_CNT, LDS_K1)
from k3 import srd, Prof

SPIN_MAX = 8000000
DBG = False
GATE_OL = False
OPRIO = 0
FWEARLY = False
SKIP = ()
THR = 0
OUTF = ""
AFIRST = False
KVEARLY = False
GROT = True
SSLEEP = 0
C_FW, C_F1, F_W, F_S, F_O1, C_KV, C_O, F_O, F_GO, L_NON, C_FK, C_OL = [L_CNT + x for x in (12, 16, 20, 24, 28, 32, 36, 40, 44, 48, 56, 60)]
F_SA = C_OL
L3_KV, L3_ZERO = 136064, 136064 + 1792

def lds_spin(k, addr, tv, ts, target=1, sleep=1):
    l, d = k.newlabel("spin"), k.newlabel("spun")
    k(f"v_mov_b32 v{tv}, {addr}\ns_mov_b32 s{ts+1}, 0")
    k.label(l)
    k(f"ds_read_b32 v{tv+1}, v{tv}\ns_waitcnt lgkmcnt(0)\nv_readfirstlane_b32 s{ts}, v{tv+1}")
    k(f"s_cmp_ge_u32 s{ts}, {target}\ns_cbranch_scc1 {d}")
    k(f"s_add_u32 s{ts+1}, s{ts+1}, 1\ns_cmp_ge_u32 s{ts+1}, {SPIN_MAX}\ns_cbranch_scc1 {d}")
    if sleep: k(f"s_sleep {sleep}")
    k(f"s_branch {l}")
    k.label(d)

def lds_set(k, addr, tv):
    k(f"v_mov_b32 v{tv}, {addr}\nv_mov_b32 v{tv+1}, 1\nds_write_b32 v{tv}, v{tv+1}")

def arrive(k, addr, last, tv, ts, skip):
    k(f"v_mov_b32 v{tv}, {addr}\nv_mov_b32 v{tv+1}, 1\ns_mov_b64 s[60:61], exec\ns_mov_b64 exec, 1")
    k(f"ds_add_rtn_u32 v{tv+2}, v{tv}, v{tv+1}\ns_waitcnt lgkmcnt(0)\ns_mov_b64 exec, s[60:61]")
    k(f"v_readfirstlane_b32 s{ts}, v{tv+2}\ns_cmp_lg_u32 s{ts}, {last}\ns_cbranch_scc1 {skip}")

def nonce_from_lds(k, vN, tv, ts):
    lds_spin(k, L_NON, tv, ts, target=1)
    k(f"ds_read_b64 {v(vN,2)}, v{tv}\ns_waitcnt lgkmcnt(0)\nv_mov_b32 v{vN+2}, v{vN}\nv_mov_b32 v{vN+3}, v{vN+1}")

def flag_store(k, sWS, soff, vN, lane, tv):
    k(f"v_lshlrev_b32 v{tv}, 4, v{lane}\ns_mov_b64 s[60:61], exec\ns_mov_b64 exec, 0xff")
    k(f"buffer_store_dwordx4 {v(vN,4)}, v{tv}, {s(sWS,4)}, s{soff} offen sc1\ns_mov_b64 exec, s[60:61]")

def poll(k, sWS, voff, vN, tv, ts, sleep=4):
    l, d = k.newlabel("poll"), k.newlabel("polled")
    k(f"s_mov_b32 s{ts}, 0")
    k.label(l)
    k(f"buffer_load_dwordx2 {v(tv,2)}, v{voff}, {s(sWS,4)}, 0 offen sc1\ns_waitcnt vmcnt(0)")
    k(f"v_cmp_ne_u64 vcc, {v(tv,2)}, {v(vN,2)}\ns_cmp_eq_u64 vcc, 0\ns_cbranch_scc1 {d}")
    k(f"s_add_u32 s{ts}, s{ts}, 1\ns_cmp_ge_u32 s{ts}, {SPIN_MAX // 20}\ns_cbranch_scc1 {d}\ns_sleep {sleep}\ns_branch {l}")
    k.label(d)

def ident(k, sB, sJ, sH, sRho, sPar, t0, t1):
    k(f"s_and_b32 s{t0}, s2, 7\ns_lshr_b32 s{t1}, s2, 3")
    k(f"s_and_b32 s{sJ}, s{t1}, 7\ns_lshr_b32 s{sPar}, s{t1}, 3\ns_lshl_b32 s{sB}, s{t0}, 2\ns_add_u32 s{sB}, s{sB}, s{sPar}")
    k(f"s_xor_b32 s{sPar}, s{sPar}, s{sJ}\ns_and_b32 s{sPar}, s{sPar}, 1")
    k(f"s_and_b32 s{sH}, s{t1}, 3\ns_lshl_b32 s{t0}, s{t0}, 2\ns_add_u32 s{sH}, s{sH}, s{t0}\ns_lshr_b32 s{sRho}, s{t1}, 2")

def side_mid(k, name, t, issue):
    SA, SB = 32, 52
    sJob, sT0, sT1, sK, sNT, sKind, sDel = 29, 30, 51, 60, 61, 95, 82
    vLane, vN, vG, vL16, vCh, vA0, vOff, vH, vT = 120, 121, 122, 123, 124, 125, 128, 129, 130
    NL_ = 40
    lw, lg, ln = k.newlabel("sw"), k.newlabel("sg"), k.newlabel("sn")
    p13, p20, p40, pend = k.newlabel("p13"), k.newlabel("p20"), k.newlabel("p40"), k.newlabel("pend")
    k(f"v_and_b32 v{vLane}, 63, v0\nv_and_b32 v{vN}, 15, v0\nv_bfe_u32 v{vG}, v0, 4, 2\nv_lshlrev_b32 v{vL16}, 4, v{vLane}\nv_mov_b32 v139, 0x7fffffff")
    k(f"s_and_b32 s98, s2, 7\ns_lshr_b32 s99, s2, 3\ns_and_b32 s100, s99, 7\ns_lshr_b32 s99, s99, 3\ns_lshl_b32 s98, s98, 2\ns_add_u32 s98, s98, s99")
    k(f"s_sub_u32 s99, s{sW}, 5\ns_lshl_b32 s99, s99, 5\ns_add_u32 s98, s98, s99")
    k(f"s_mul_i32 s99, s100, 40\ns_add_u32 s99, s99, s98\ns_mul_i32 s100, s100, 20\ns_add_u32 s100, s100, s98\ns_add_u32 s100, s100, 280")
    k(f"s_cmp_lt_u32 s98, 40\ns_cselect_b32 s{sJob}, s99, s100\ns_cmp_ge_u32 s98, 60\ns_cselect_b32 s{sJob}, 999, s{sJob}")
    if "noSide" in SKIP: k(f"s_mov_b32 s{sKind}, 0\ns_branch {p40}")
    k(f"s_mov_b32 s{sKind}, 0\ns_cmp_eq_u32 s{sW}, 7\ns_cbranch_scc1 {lg}\ns_cmp_ge_u32 s{sJob}, 320\ns_cbranch_scc1 {lw}")
    k(f"s_mov_b32 s{sKind}, 1\ns_load_dwordx4 s[16:19], s[0:1], {A_CRE}\ns_load_dwordx4 s[20:23], s[0:1], {A_LRE}\ns_load_dwordx2 s[24:25], s[0:1], {A_LOGDT}")
    k(f"s_mul_i32 s{sT0}, s{sJob}, 1639\ns_lshr_b32 s{sT0}, s{sT0}, 16\ns_mul_i32 s{sK}, s{sT0}, 40\ns_sub_u32 s{sK}, s{sJob}, s{sK}\ns_mul_i32 s{sNT}, s{sT0}, 5")
    k(f"v_mul_u32_u24 v{vOff}, 1280, v{vN}\nv_and_b32 v{vH}, 1, v{vG}\nv_lshl_add_u32 v{vOff}, v{vH}, 4, v{vOff}")
    k(f"s_lshl_b32 s{sT0}, s{sK}, 5\nv_lshl_add_u32 v{vCh}, v{vN}, 1, s{sT0}")
    k(f"s_mul_i32 s{sT1}, s{sNT}, {16*1280}\ns_add_u32 s{sT1}, s{sT1}, s{sT0}")
    k("s_waitcnt lgkmcnt(0)")
    srd(k, SA, 16, 819200); srd(k, SB, 18, 819200)
    for j in range(5):
        k(f"s_add_u32 s{sT0}, s{sT1}, {j*16*1280}")
        k(f"buffer_load_dwordx4 {v(32+8*j,4)}, v{vOff}, {s(SA,4)}, s{sT0} offen\nbuffer_load_dwordx4 {v(36+8*j,4)}, v{vOff}, {s(SB,4)}, s{sT0} offen")
    srd(k, 64 + 0 if False else 72, 20, 1280); srd(k, 76, 22, 1280); srd(k, 100 - 0 if False else 68, 24, 1280)
    k(f"buffer_load_ushort v{vA0}, v{vCh}, s[72:75], 0 offen\nbuffer_load_ushort v{vA0+1}, v{vCh}, s[76:79], 0 offen\nbuffer_load_ushort v{vA0+2}, v{vCh}, s[68:71], 0 offen")
    k(f"s_waitcnt vmcnt({10 + 13})\ns_barrier\ns_waitcnt vmcnt(13)\ns_barrier\ns_branch {pend}")
    k.label(lw)
    k(f"s_cmp_ge_u32 s{sJob}, 480\ns_cbranch_scc1 {p40}")
    k(f"s_mov_b32 s{sKind}, 2\ns_load_dwordx2 s[16:17], s[0:1], {A_WO}")
    k(f"s_sub_u32 s{sJob}, s{sJob}, 320\ns_mul_i32 s{sT0}, s{sJob}, 3277\ns_lshr_b32 s{sT0}, s{sT0}, 16\ns_mul_i32 s{sK}, s{sT0}, 20\ns_sub_u32 s{sK}, s{sJob}, s{sK}\ns_mul_i32 s{sNT}, s{sT0}, 5")
    k(f"s_lshr_b32 s{sT0}, s{sK}, 1\ns_mul_i32 s{sT0}, s{sT0}, 80\ns_and_b32 s{sT1}, s{sK}, 1\ns_lshl_b32 s{sT1}, s{sT1}, 3\ns_add_u32 s{sT0}, s{sT0}, s{sT1}")
    k(f"s_sub_u32 s{sT1}, s{sK}, 16\ns_mul_i32 s{sT1}, s{sT1}, 160\ns_add_u32 s{sT1}, s{sT1}, 16")
    k(f"s_cmp_lt_u32 s{sK}, 16\ns_cselect_b32 s{sT0}, s{sT0}, s{sT1}\ns_cselect_b32 s{sDel}, 4, 80")
    k(f"v_mul_u32_u24 v{vOff}, {20*1280}, v{vG}\nv_lshl_add_u32 v{vOff}, v{vN}, 1, v{vOff}")
    k(f"s_mul_i32 s{sT0}, s{sT0}, 1280\ns_lshl_b32 s{sT1}, s{sNT}, 5\ns_add_u32 s{sT0}, s{sT0}, s{sT1}\ns_mul_i32 s{sDel}, s{sDel}, 1280")
    k("s_waitcnt lgkmcnt(0)"); srd(k, SA, 16, 819200)
    for t4 in range(5):
        for j in range(8):
            d = 32 + 8*t4 + j
            if j < 4: k(f"s_add_u32 s{sT1}, s{sT0}, {j*1280 + t4*32}")
            else: k(f"s_add_u32 s{sT1}, s{sT0}, s{sDel}\ns_add_u32 s{sT1}, s{sT1}, {(j-4)*1280 + t4*32}")
            k(f"buffer_load_ushort v{d}, v{vOff}, {s(SA,4)}, s{sT1} offen")
    k(f"s_waitcnt vmcnt({10 + 40})\ns_barrier\ns_waitcnt vmcnt(40)\ns_barrier\ns_branch {pend}")
    k.label(lg)
    k(f"s_mov_b32 s{sKind}, 3\ns_load_dwordx2 s[16:17], s[0:1], {A_X}\ns_load_dwordx2 s[18:19], s[0:1], {A_GATE}")
    k(f"s_lshl_b32 s{sJob}, s{sC}, 4\ns_add_u32 s{sJob}, s{sJob}, s{sQ}\ns_mul_i32 s{sT0}, s{sJob}, {8*1280}")
    k(f"v_lshrrev_b32 v{vCh}, 3, v{vLane}\nv_and_b32 v{vA0}, 7, v{vLane}\nv_lshlrev_b32 v{vH}, 4, v{vA0}\nv_mul_u32_u24 v{vOff}, 1280, v{vCh}\nv_add_u32 v{vOff}, v{vOff}, v{vH}")
    k("s_waitcnt lgkmcnt(0)"); srd(k, SA, 16, 2621440); srd(k, SB, 18, 1280)
    for c in range(10):
        k(f"buffer_load_dwordx4 {v(32+4*c,4)}, v{vOff}, {s(SA,4)}, s{sT0} offen offset:{128*c}")
        k(f"buffer_load_dwordx4 {v(72+4*c,4)}, v{vH}, {s(SB,4)}, 0 offen offset:{128*c}")
    k(f"s_waitcnt vmcnt({10 + 20})\ns_barrier\ns_waitcnt vmcnt(20)\ns_barrier\ns_branch {pend}")
    k.label(p40)
    k("s_waitcnt vmcnt(10)\ns_barrier\ns_waitcnt vmcnt(0)\ns_barrier")
    k.label(pend)
    jitter(k, "side")
    k(f"s_load_dwordx2 s[16:17], s[0:1], {A_WS}")
    k("s_waitcnt vmcnt(0) lgkmcnt(0)"); srd(k, 8, 16, WS_SIZE)
    fw, fg, fn, done = k.newlabel("fw"), k.newlabel("fg"), k.newlabel("fn"), k.newlabel("sdone")
    WT = " sc1"
    k(f"s_cmp_eq_u32 s{sKind}, 2\ns_cbranch_scc1 {fw}\ns_cmp_eq_u32 s{sKind}, 3\ns_cbranch_scc1 {fg}\ns_cmp_eq_u32 s{sKind}, 0\ns_cbranch_scc1 {fn}")
    a0, a1, a2 = vA0, vA0 + 1, vA0 + 2
    for x in (a0, a1, a2): k(f"v_lshlrev_b32 v{x}, 16, v{x}")
    lam_calc(k, a0, a1, a2, vT, vT+1, vT+2, vT+3)
    k(f"v_add_f32 v{vT}, -1.0, v{vT}\nv_mul_f32 v{vT+2}, v{a0}, v{a0}\nv_fmac_f32 v{vT+2}, v{a1}, v{a1}\nv_rcp_f32 v{vT+2}, v{vT+2}")
    k(f"v_mul_f32 v{vT+4}, v{vT}, v{a0}\nv_fmac_f32 v{vT+4}, v{vT+1}, v{a1}\nv_mul_f32 v{vT+5}, v{vT+1}, v{a0}\nv_fma_f32 v{vT+5}, -v{vT}, v{a1}, v{vT+5}")
    k(f"v_add_f32 v{vT+2}, v{vT+2}, v{vT+2}\nv_mul_f32 v{vT+4}, v{vT+4}, v{vT+2}\nv_mul_f32 v{vT+5}, v{vT+5}, v{vT+2}")
    k(f"s_sub_u32 s{sT0}, s{sW}, 5\ns_lshl_b32 s{sT0}, s{sT0}, 7\ns_add_u32 s{sT0}, s{sT0}, {L_COEF}")
    k(f"v_lshl_add_u32 v{vT+6}, v{vN}, 3, s{sT0}\nds_write_b64 v{vT+6}, {v(vT+4,2)}")
    k(f"v_lshl_add_u32 v{vT+6}, v{vH}, 6, s{sT0}\ns_waitcnt lgkmcnt(0)")
    CF_ = 80
    for j in range(4): k(f"ds_read_b128 {v(CF_+4*j,4)}, v{vT+6} offset:{16*j}")
    k(f"v_cmp_gt_u32 vcc, 2, v{vG}\ns_waitcnt lgkmcnt(0)")
    for c in range(8):
        cr, ci = CF_ + 2*c, CF_ + 1 + 2*c
        k(f"v_sub_f32 v{vT}, 0, v{ci}\nv_sub_f32 v{vT+1}, 0, v{cr}\nv_cndmask_b32 v{cr}, v{vT}, v{cr}, vcc\nv_cndmask_b32 v{ci}, v{vT+1}, v{vT}, vcc")
    k(f"s_mul_i32 s{sT0}, s{sNT}, 40\ns_add_u32 s{sT0}, s{sT0}, s{sK}\ns_lshl_b32 s{sT0}, s{sT0}, 10\ns_add_u32 s{sT0}, s{sT0}, {WS_CF}")
    for j in range(5):
        for c in range(8):
            re, im = 32 + 8*j + (c >> 1), 36 + 8*j + (c >> 1)
            if c & 1: k(f"v_and_b32 v{vT}, 0xffff0000, v{re}\nv_and_b32 v{vT+1}, 0xffff0000, v{im}")
            else: k(f"v_lshlrev_b32 v{vT}, 16, v{re}\nv_lshlrev_b32 v{vT+1}, 16, v{im}")
            k(f"v_mul_f32 v{100+c}, v{CF_+2*c}, v{vT}\nv_fmac_f32 v{100+c}, v{CF_+1+2*c}, v{vT+1}")
        o = 108 + 4*(j & 1)
        for c in range(4): k(f"v_cvt_pk_bf16_f32 v{o+c}, v{100+2*c}, v{101+2*c}")
        k(f"s_add_u32 s{sT1}, s{sT0}, {j*40960}\nbuffer_store_dwordx4 {v(o,4)}, v{vL16}, s[8:11], s{sT1} offen{WT}")
    k(f"s_branch {done}")
    k.label(fw)
    k(f"s_mul_i32 s{sT0}, s{sNT}, 20\ns_add_u32 s{sT0}, s{sT0}, s{sK}\ns_lshl_b32 s{sT0}, s{sT0}, 10\ns_add_u32 s{sT0}, s{sT0}, {WS_WF}")
    for t4 in range(5):
        for c in range(4): k(f"v_lshl_or_b32 v{80+4*t4+c}, v{33+8*t4+2*c}, 16, v{32+8*t4+2*c}")
        k(f"s_add_u32 s{sT1}, s{sT0}, {t4*20480}\nbuffer_store_dwordx4 {v(80+4*t4,4)}, v{vL16}, s[8:11], s{sT1} offen{WT}")
    k(f"s_branch {done}")
    k.label(fg)
    k(f"v_mov_b32 v{vT}, 0\nv_mov_b32 v{vT+1}, 0")
    for r in range(0, 40, 2):
        k(f"v_dot2c_f32_bf16 v{vT}, v{32+r}, v{72+r}\nv_dot2c_f32_bf16 v{vT+1}, v{33+r}, v{73+r}")
    k(f"s_nop 3\nv_add_f32 v{vT}, v{vT}, v{vT+1}")
    for m_ in ("quad_perm:[1,0,3,2]", "quad_perm:[2,3,0,1]", "row_half_mirror"): k(f"v_add_f32_dpp v{vT}, v{vT}, v{vT} {m_} row_mask:0xf bank_mask:0xf")
    k(f"v_mul_f32 v{vT}, {LOG2E:#x}, v{vT}\nv_exp_f32 v{vT}, -v{vT}\nv_add_f32 v{vT}, 1.0, v{vT}\nv_rcp_f32 v{vT}, v{vT}")
    k(f"s_lshl_b32 s{sT0}, s{sJob}, 7\ns_add_u32 s{sT0}, s{sT0}, {WS_G}")
    k(f"v_lshlrev_b32 v{vT+1}, 2, v{vCh}\nv_mov_b32 v{vT+2}, 0x7fffffff\nv_cmp_eq_u32 vcc, 0, v{vA0}\nv_cndmask_b32 v{vT+1}, v{vT+2}, v{vT+1}, vcc")
    k(f"buffer_store_dword v{vT}, v{vT+1}, s[8:11], s{sT0} offen{WT}")
    k.label(fn)
    k.label(done)
    k(f"s_branch {name}_sidedone")

JIT = None
def jitter(k, role):
    if JIT is None or role not in JIT: return
    l = k.newlabel("jit"); d = k.newlabel("jitd")
    k("s_waitcnt lgkmcnt(0)\ns_memtime s[100:101]\ns_waitcnt lgkmcnt(0)\ns_mul_i32 s100, s100, 40503\ns_lshr_b32 s100, s100, 9\ns_and_b32 s101, s100, 127")
    k.label(l)
    k(f"s_cmp_eq_u32 s101, 0\ns_cbranch_scc1 {d}\ns_sleep 1\ns_sub_u32 s101, s101, 1\ns_branch {l}")
    k.label(d)

class Hooks:
    def __init__(self, name, P): self.name, self.P = name, P
    def elect(self, k):
        l = k.newlabel("noelect")
        k(f"s_cmp_lg_u32 s{sW}, 4\ns_cbranch_scc1 {l}\ns_cmp_ge_u32 s2, 8\ns_cbranch_scc1 {l}")
        k(f"s_load_dwordx2 s[40:41], s[0:1], {A_DBG}\ns_memrealtime s[42:43]\ns_waitcnt lgkmcnt(0)")
        k("s_or_b32 s42, s42, 1\nv_mov_b32 v100, s42\nv_mov_b32 v101, s43\nv_mov_b32 v102, 0\nv_mov_b32 v103, 0\nv_mov_b32 v104, 128")
        k("s_mov_b64 s[60:61], exec\ns_mov_b64 exec, 1\nglobal_atomic_cmpswap_x2 v104, v[100:103], s[40:41] sc1\ns_mov_b64 exec, s[60:61]")
        k.label(l)
    def get_nonce(self, k, sN):
        l, d = k.newlabel("nn"), k.newlabel("nnd")
        k("s_mov_b32 s7, 0")
        k.label(l)
        k(f"v_readfirstlane_b32 s{sN}, v106\nv_readfirstlane_b32 s{sN+1}, v107")
        k(f"s_cmp_lg_u32 s{sN}, 0\ns_cbranch_scc1 {d}\ns_add_u32 s7, s7, 1\ns_cmp_ge_u32 s7, {SPIN_MAX // 20}\ns_cbranch_scc1 {d}")
        k(f"global_load_dwordx2 v[106:107], v104, s[{k1.H_DBG}:{k1.H_DBG+1}] sc1\ns_waitcnt vmcnt(0)\ns_branch {l}")
        k.label(d)
        k(f"v_mov_b32 v108, s{sN}\nv_mov_b32 v109, s{sN+1}\nv_mov_b32 v110, {L_NON}\nds_write_b64 v110, v[108:109]")
    def jit(self, k, role): jitter(k, role)
    def fetch_nonce(self, k):
        lds_spin(k, L_NON, 254, 4)
        k("ds_read_b64 v[250:251], v254\ns_waitcnt lgkmcnt(0)\nv_mov_b32 v252, v250\nv_mov_b32 v253, v251")
    def early_done(self, k, younger):
        k(f"s_waitcnt vmcnt({younger})")
        l = k.newlabel("nfk")
        lds_spin(k, L_NON, 254, 4)
        k("ds_read_b64 v[250:251], v254\ns_waitcnt lgkmcnt(0)\nv_mov_b32 v252, v250\nv_mov_b32 v253, v251")
        k(f"v_mov_b32 v254, {C_FK}\nv_mov_b32 v255, 1\ns_mov_b64 s[60:61], exec\ns_mov_b64 exec, 1")
        k("ds_add_rtn_u32 v254, v254, v255\ns_waitcnt lgkmcnt(0)\ns_mov_b64 exec, s[60:61]")
        k(f"v_readfirstlane_b32 s4, v254\ns_cmp_lg_u32 s4, 4\ns_cbranch_scc1 {l}")
        k(f"s_lshl_b32 s4, s{sC}, 4\ns_add_u32 s4, s4, s{sQ}\ns_lshl_b32 s4, s4, 7\ns_add_u32 s4, s4, {WS_FK}")
        flag_store(k, 40, 4, 250, 194, 254)
        k.label(l)
    def side_done(self, k, name):
        self.P.n = 1; self.P.stamp()
        k("s_waitcnt vmcnt(0)")
        self.P.stamp()
        nonce_from_lds(k, 240, 244, 4)
        k("v_and_b32 v247, 63, v0")
        l1, l2, l3 = k.newlabel("nfw"), k.newlabel("nf1"), k.newlabel("nfk7")
        k(f"s_cmp_eq_u32 s{sW}, 7\ns_cbranch_scc1 {l1}")
        arrive(k, C_FW, 1, 244, 4, l1)
        k(f"s_and_b32 s4, s2, 7\ns_lshr_b32 s5, s2, 3\ns_and_b32 s6, s5, 7\ns_lshr_b32 s5, s5, 3\ns_lshl_b32 s4, s4, 2\ns_add_u32 s4, s4, s5")
        k(f"s_lshl_b32 s6, s6, 5\ns_add_u32 s4, s4, s6\ns_lshl_b32 s4, s4, 7\ns_add_u32 s4, s4, {WS_FW}")
        flag_store(k, 8, 4, 240, 247, 244)
        k.label(l1)
        k(f"s_cmp_lg_u32 s{sW}, 7\ns_cbranch_scc1 {l3}")
        k(f"s_and_b32 s7, s{sQ}, 1\ns_lshl_b32 s7, s7, 2")
        arrive(k, C_FK, "s7", 244, 4, l3)
        k(f"s_lshl_b32 s4, s{sC}, 4\ns_add_u32 s4, s4, s{sQ}\ns_lshl_b32 s4, s4, 7\ns_add_u32 s4, s4, {WS_FK}")
        flag_store(k, 8, 4, 240, 247, 244)
        k.label(l3)
        arrive(k, C_F1, 6, 244, 4, l2)
        k(f"s_lshl_b32 s4, s{sC}, 4\ns_add_u32 s4, s4, s{sQ}\ns_lshl_b32 s4, s4, 7\ns_add_u32 s4, s4, {WS_F1}")
        flag_store(k, 8, 4, 240, 247, 244)
        k.label(l2)
        self.P.stamp()
        k(f"s_branch {name}_gemm")
    def compute_done(self, k, name):
        self.P.n = 1; self.P.stamp()
        k(f"s_lshl_b32 s52, s{sC}, 4\ns_add_u32 s52, s52, s{sQ}\ns_lshl_b32 s52, s52, 7\ns_add_u32 s52, s52, {WS_F1}")
        if KVEARLY:
            k(f"s_and_b32 s4, s2, 7\ns_lshr_b32 s5, s2, 3\ns_and_b32 s5, s5, 3\ns_lshl_b32 s4, s4, 2\ns_add_u32 s4, s4, s5\ns_lshl_b32 s54, s4, 16\ns_add_u32 s54, s54, {WS_KVT}")
            k("v_lshlrev_b32 v81, 4, v197\nv_mov_b32 v82, 0x7fffffff\nv_cmp_gt_u32 vcc, 210, v197\nv_cndmask_b32 v81, v82, v81, vcc")
            for c in range(16):
                k(f"s_add_u32 s{4 + (c&1)}, s54, {c*4096}")
                k(f"buffer_load_dwordx4 {v(92+4*c,4)}, v81, s[40:43], s{4 + (c&1)} offen sc1")
            k("s_waitcnt vmcnt(16)")
        else: k("s_waitcnt vmcnt(0)")
        self.P.stamp()
        l2 = k.newlabel("nf1")
        arrive(k, C_F1, 6, 244, 4, l2)
        flag_store(k, 40, 52, 250, 194, 244)
        k.label(l2)
        self.P.stamp()
        k(f"s_branch {name}_ojob")

def gen_gemm(k, name, P, GO=3, NPRE=3, P3=None, NL=0):
    ND = 2
    sWS, sOUT, sX, sDS = 8, 12, 16, 20
    sV, sB, sJ, sH, sRho, sPar = 26, 27, 28, 29, 30, 53
    sS, sCF, sO, sF = 32, 36, 44, 48
    sK, sT0, sT1, sT2, sKlim, sTok = 56, 57, 58, 59, 62, 63
    ACC = 0
    vL16, vK0, vK1, vLane, vN, vG4, vTok = 80, 81, 82, 83, 84, 85, 86
    vG, vT = 88, 92
    BUF, PRE, NON = 124, 196, 116
    def buf(i, f): return v(BUF + (i % ND)*36 + f*4, 4)
    k.label(f"{name}_gemm")
    jitter(k, "gemm")
    k("s_setprio 0")
    k(f"s_load_dwordx2 s[4:5], s[0:1], {A_WS}\ns_load_dwordx2 s[6:7], s[0:1], {A_OUT}")
    k(f"s_load_dwordx2 s[40:41], s[0:1], {A_X}\ns_load_dwordx2 s[42:43], s[0:1], {A_DSKIP}")
    k(f"s_sub_u32 s{sV}, s{sW}, 4")
    ident(k, sB, sJ, sH, sRho, sPar, sT0, sT1)
    k(f"v_and_b32 v{vLane}, 63, v0\nv_lshlrev_b32 v{vL16}, 4, v{vLane}\nv_and_b32 v{vN}, 15, v{vLane}\nv_lshrrev_b32 v{vG4}, 4, v{vLane}")
    k("s_waitcnt lgkmcnt(0)")
    srd(k, sWS, 4, WS_SIZE); srd(k, sX, 40, 2621440); srd(k, sDS, 42, 1280); srd(k, sOUT, 6, 5242880)
    k(f"s_mul_i32 s{sT0}, s{sB}, {4*40960}")
    for tj in range(4): k(f"s_add_u32 s{sS+tj}, s{sT0}, {WS_S + tj*40960}")
    k(f"s_mul_i32 s{sT0}, s{sJ}, {5*40960}")
    for nt in range(5): k(f"s_add_u32 s{sCF+nt}, s{sT0}, {WS_CF + nt*40960}")
    k(f"s_mul_i32 s{sT0}, s{sB}, {4*20480}")
    for tj in range(4): k(f"s_add_u32 s{sO+tj}, s{sT0}, {WS_O + tj*20480}")
    k(f"s_mul_i32 s{sT0}, s{sJ}, {5*20480}")
    for nt in range(5): k(f"s_add_u32 s{sF+nt}, s{sT0}, {WS_WF + nt*20480}")
    k(f"v_lshrrev_b32 v{vTok}, 2, v{vN}\nv_lshlrev_b32 v{vTok}, 3, v{vTok}\nv_and_b32 v{vT}, 1, v{vN}\nv_lshl_add_u32 v{vTok}, v{vT}, 2, v{vTok}")
    k(f"v_bfe_u32 v{vT}, v{vN}, 1, 1\nv_add_u32 v{vTok}, v{vTok}, v{vT}")
    k(f"s_lshr_b32 s{sT0}, s{sV}, 1\ns_lshl_b32 s{sT0}, s{sT0}, 5\ns_and_b32 s{sT1}, s{sV}, 1\ns_lshl_b32 s{sT1}, s{sT1}, 1\ns_add_u32 s{sTok}, s{sT0}, s{sT1}\ns_lshl_b32 s{sT0}, s{sB}, 6\ns_add_u32 s{sTok}, s{sTok}, s{sT0}")
    XV, DV = vT, vT + 10
    k(f"s_mul_i32 s{sT0}, s{sTok}, 1280\ns_mul_i32 s{sT1}, s{sJ}, 160\ns_add_u32 s{sT0}, s{sT0}, s{sT1}")
    k(f"v_mul_u32_u24 v{vT+20}, 1280, v{vTok}\nv_lshl_add_u32 v{vT+20}, v{vG4}, 3, v{vT+20}\nv_lshlrev_b32 v{vT+21}, 3, v{vG4}")
    for nt in range(5): k(f"buffer_load_dwordx2 {v(XV+2*nt,2)}, v{vT+20}, {s(sX,4)}, s{sT0} offen offset:{nt*32}")
    for nt in range(5): k(f"buffer_load_dwordx2 {v(DV+2*nt,2)}, v{vT+21}, {s(sDS,4)}, s{sT1} offen offset:{nt*32}")
    nonce_from_lds(k, NON, 120, sT0)
    P3.n = 4; P3.stamp()
    k("s_waitcnt vmcnt(0)")
    for nt in range(5):
        for r in range(4):
            xr, dr = XV + 2*nt + (r >> 1), DV + 2*nt + (r >> 1)
            t0, t1 = 120 + 2*(r & 1), 121 + 2*(r & 1)
            if r & 1: k(f"v_and_b32 v{t0}, 0xffff0000, v{xr}\nv_and_b32 v{t1}, 0xffff0000, v{dr}")
            else: k(f"v_lshlrev_b32 v{t0}, 16, v{xr}\nv_lshlrev_b32 v{t1}, 16, v{dr}")
            k(f"v_mul_f32 v{ACC + nt*4 + r}, v{t0}, v{t1}")
    for tj in range(3, -1, -1):
        k(f"s_cmp_eq_u32 s{sV}, {tj}\ns_cselect_b64 vcc, -1, 0")
        for r in range(20):
            if tj == 0: k(f"v_cndmask_b32 v{ACC+r}, 0, v{ACC+r}, vcc")
            else: k(f"v_cndmask_b32 v{ACC+tj*20+r}, 0, v{ACC+r}, vcc")
    if not FWEARLY and "noFW" not in SKIP: lds_spin(k, C_F1, 120, sT0, target=7)
    lw = k.newlabel("notw")
    k(f"s_cmp_lg_u32 s{sW}, 5\ns_cbranch_scc1 {lw}")
    k(f"s_lshl_b32 s{sT0}, s{sJ}, 12\ns_add_u32 s{sT0}, s{sT0}, {WS_FW}\nv_and_b32 v120, 31, v{vLane}\nv_lshlrev_b32 v120, 7, v120\nv_add_u32 v120, s{sT0}, v120")
    if "noFW" not in SKIP: poll(k, sWS, 120, NON, 122, sT0)
    lds_set(k, F_W, 120)
    k.label(lw)
    lds_spin(k, F_W, 120, sT0)
    if FWEARLY and "noGate" not in SKIP: lds_spin(k, C_F1, 120, sT0, target=7)
    if GATE_OL: lds_spin(k, C_OL, 120, sT0, target=4)
    P3.stamp()
    def preload():
        k(f"s_lshl_b32 s55, s{sV}, 10")
        for n in range(NPRE):
            k(f"v_add_u32 v{vT+4}, s55, v{vL16}")
            for f in range(5):
                k(f"buffer_load_dwordx4 {v(PRE + (n*5+f)*4, 4)}, v{vT+4}, {s(sWS,4)}, s{sF+f} offen sc1")
                if THR: k(f"s_waitcnt vmcnt({THR})")
            k(f"s_add_u32 s55, s55, 4096")
    if not AFIRST: preload()
    k(f"s_mul_i32 s{sT0}, s{sPar}, {5 if GROT else 0}\ns_lshl_b32 s{sT0}, s{sT0}, 2\ns_add_u32 s{sT0}, s{sT0}, s{sV}\ns_lshl_b32 s{sK}, s{sT0}, 10")
    k(f"s_lshl_b32 s{sKlim}, s{sV}, 10\ns_add_u32 s{sKlim}, s{sKlim}, 40960")
    steps = [("S", i) for i in range(10)] + [("O", i) for i in range(5)]
    inl = lambda i: 2 <= i < 2 + NL
    nloads = [(4 if inl(i) else 9) for i in range(10)] + [(4 if n < NPRE else 9) if n < 4 else (8 if n < NPRE else 13) for n in range(5)]
    vLW = 87
    def vk(i): return vK0 if i % 2 == 0 else vK1
    if AFIRST: k(f"s_mul_i32 s54, s{sPar}, {5 if GROT else 0}\ns_add_u32 s54, s54, s{sV}")
    OFFS = [0, 5, 1, 2, 3, 4, 6, 7, 8, 9]
    def issue_addr(i):
        kind, n = steps[i]
        if AFIRST and kind == "S":
            k(f"s_add_u32 s{sT0}, s54, {OFFS[i]}\ns_sub_u32 s{sT1}, s{sT0}, 10\ns_cmp_ge_u32 s{sT0}, 10\ns_cselect_b32 s{sT0}, s{sT1}, s{sT0}")
            k(f"s_lshl_b32 s{sT0}, s{sT0}, 2\ns_add_u32 s{sT0}, s{sT0}, s{sV}\ns_lshl_b32 s{sK}, s{sT0}, 10\nv_add_u32 v{vk(i)}, s{sK}, v{vL16}")
            return
        if kind == "O" and n == 0: k(f"s_lshl_b32 s{sK}, s{sV}, 10")
        k(f"v_add_u32 v{vk(i)}, s{sK}, v{vL16}")
        if kind == "O" and n == 4: k(f"v_lshlrev_b32 v{vT+2}, 3, v{vLane}\nv_add_u32 v{vT+2}, s{sK}, v{vT+2}")
        k(f"s_add_u32 s{sK}, s{sK}, 4096")
        if kind == "S":
            k(f"s_sub_u32 s{sT0}, s{sK}, 40960\ns_cmp_ge_u32 s{sK}, s{sKlim}\ns_cselect_b32 s{sK}, s{sT0}, s{sK}")
    def issue_tok(i):
        kind, n = steps[i]
        tb = sS if kind == "S" else sO
        if kind == "O" and n == 4:
            for f in range(4):
                b0 = BUF + (i % ND)*36 + f*4
                k(f"buffer_load_dwordx2 {v(b0,2)}, v{vT+2}, {s(sWS,4)}, s{tb+f} offen sc1\nbuffer_load_dwordx2 {v(b0+2,2)}, v{vT+2}, {s(sWS,4)}, s{tb+f} offen offset:512 sc1")
        else:
            for f in range(4): k(f"buffer_load_dwordx4 {buf(i,f)}, v{vk(i)}, {s(sWS,4)}, s{tb+f} offen sc1")
    def issue_w(i):
        kind, n = steps[i]
        wb = sCF if kind == "S" else sF
        if kind == "S" and inl(i):
            for f in range(5):
                off = (i - 2)*20480 + f*1024
                k(f"ds_read_b128 {buf(i,4+f)}, v{vLW if off < 61440 else vT+3} offset:{off if off < 61440 else off - 61440}")
        elif kind == "S" or n >= NPRE:
            for f in range(5):
                k(f"buffer_load_dwordx4 {buf(i,4+f)}, v{vk(i)}, {s(sWS,4)}, s{wb+f} offen sc1")
                if THR and i < 2: k(f"s_waitcnt vmcnt({THR})")
    def issue(i): issue_addr(i); issue_tok(i); issue_w(i)
    issue_addr(0); issue_w(0); issue_addr(1); issue_w(1)
    def dma_chunk():
        k(f"v_add_u32 v{vT+4}, s54, v{vL16}")
        for f in range(5):
            k(f"s_add_u32 m0, s55, {f*1024}")
            k(f"buffer_load_dwordx4 v{vT+4}, {s(sWS,4)}, s{sCF+f} offen sc1 lds")
        k(f"s_add_u32 s55, s55, 20480\ns_add_u32 s54, s54, 4096\ns_sub_u32 s{sT0}, s54, 40960\ns_cmp_ge_u32 s54, s{sKlim}\ns_cselect_b32 s54, s{sT0}, s54")
    if NL:
        lds_spin(k, C_F1, 120, sT0, target=7)
        if "noOL" not in SKIP: lds_spin(k, C_OL, 120, sT0, target=4)
        k(f"s_mul_i32 s55, s{sV}, 5120\nv_add_u32 v{vLW}, s55, v{vL16}\nv_add_u32 v{vT+3}, 61440, v{vLW}\ns_mov_b32 s54, s{sK}")
        k(f"s_add_u32 s{sT2}, s55, {NL*20480}")
    def gloads():
        k(f"s_lshl_b32 s{sT0}, s{sB}, 10\ns_add_u32 s{sT0}, s{sT0}, {WS_G}")
        k(f"v_lshrrev_b32 v{vT+22}, 3, v{vTok}\nv_lshlrev_b32 v{vT+22}, 7, v{vT+22}\nv_and_b32 v{vT+23}, 7, v{vTok}\nv_lshl_add_u32 v{vT+22}, v{vT+23}, 2, v{vT+22}")
        for tj in range(4): k(f"buffer_load_dword v{vG+tj}, v{vT+22}, {s(sWS,4)}, s{sT0} offen offset:{512*(tj >> 1) + 8*(tj & 1)} sc1")
    def spoll(odd, flag):
        l = k.newlabel("nsp")
        k(f"s_cmp_lg_u32 s{sW}, 7\ns_cbranch_scc1 {l}")
        k(f"s_lshr_b32 s{sT0}, s{sB}, 1\ns_lshl_b32 s{sT0}, s{sT0}, 11\ns_add_u32 s{sT0}, s{sT0}, {WS_F1 + 128*odd}\nv_and_b32 v120, 7, v{vLane}\nv_lshlrev_b32 v120, 8, v120\nv_add_u32 v120, s{sT0}, v120")
        poll(k, sWS, 120, NON, 122, sT0, sleep=1)
        lds_set(k, flag, 120)
        k.label(l)
        lds_spin(k, flag, 120, sT0, sleep=1)
    if AFIRST:
        assert NL == 0
        P.stamp()
        spoll(0, F_SA)
        P.stamp(); P3.stamp()
        issue_tok(0); issue_tok(1); preload()
        special = {0: 4 + 5*NPRE, 1: 5*NPRE + 13, 2: 13}
    else:
        P.stamp()
        ls, lrest, ldone = k.newlabel("nots"), k.newlabel("rest"), k.newlabel("dmadone")
        k(f"s_cmp_lg_u32 s{sW}, 7\ns_cbranch_scc1 {lrest}")
        k(f"s_lshr_b32 s{sT0}, s{sB}, 1\ns_lshl_b32 s{sT0}, s{sT0}, 11\ns_add_u32 s{sT0}, s{sT0}, {WS_F1}\nv_and_b32 v120, 15, v{vLane}\nv_lshlrev_b32 v120, 7, v120\nv_add_u32 v120, s{sT0}, v120")
        lp, lnc, lok = k.newlabel("sp"), k.newlabel("nochunk"), k.newlabel("sok")
        k(f"s_mov_b32 s{sT1}, 0")
        k.label(lp)
        if NL:
            k(f"s_cmp_ge_u32 s55, s{sT2}\ns_cbranch_scc1 {lnc}")
            dma_chunk()
            k.label(lnc)
        if "noS" in SKIP: k(f"s_branch {lok}")
        k(f"buffer_load_dwordx2 v[122:123], v120, {s(sWS,4)}, 0 offen sc1\ns_waitcnt vmcnt(0)")
        k(f"v_cmp_ne_u64 vcc, v[122:123], {v(NON,2)}\ns_cmp_eq_u64 vcc, 0\ns_cbranch_scc1 {lok}")
        if SSLEEP: k(f"s_sleep {SSLEEP}")
        k(f"s_add_u32 s{sT1}, s{sT1}, 1\ns_cmp_lt_u32 s{sT1}, {SPIN_MAX // 20}\ns_cbranch_scc1 {lp}")
        k.label(lok)
        lds_set(k, F_S, 120)
        k.label(lrest)
        if NL:
            lr2 = k.newlabel("r2")
            k.label(lr2)
            k(f"s_cmp_ge_u32 s55, s{sT2}\ns_cbranch_scc1 {ldone}")
            dma_chunk()
            k(f"s_branch {lr2}")
            k.label(ldone)
        if "noS" not in SKIP: lds_spin(k, F_S, 120, sT0, sleep=1)
        P.stamp(); P3.stamp()
        issue_tok(0)
        k(f"s_lshl_b32 s{sT0}, s{sB}, 10\ns_add_u32 s{sT0}, s{sT0}, {WS_G}")
        k(f"v_lshrrev_b32 v{vT+22}, 3, v{vTok}\nv_lshlrev_b32 v{vT+22}, 7, v{vT+22}\nv_and_b32 v{vT+23}, 7, v{vTok}\nv_lshl_add_u32 v{vT+22}, v{vT+23}, 2, v{vT+22}")
        for tj in range(4): k(f"buffer_load_dword v{vG+tj}, v{vT+22}, {s(sWS,4)}, s{sT0} offen offset:{512*(tj >> 1) + 8*(tj & 1)} sc1")
        issue_tok(1)
        nloads[1] = 4
        special = {}
    for i in range(len(steps)):
        kind, n = steps[i]
        if kind == "O" and n == 0:
            P.stamp()
            for tj in range(4):
                for r in range(0, 20, 2):
                    k(f"v_pk_mul_f32 {v(ACC+tj*20+r,2)}, {v(ACC+tj*20+r,2)}, {v(vG + (tj & 2), 2)} op_sel:[0,{tj & 1}] op_sel_hi:[1,{tj & 1}]")
        k(f"s_waitcnt vmcnt({special.get(i, nloads[i+1] if i + 1 < len(steps) else 0)})" + (f" lgkmcnt({5 if inl(i+1) else 0})" if inl(i) else ""))
        def mm(tj, nt, i=i, kind=kind, n=n):
            d = v(ACC + (tj*5+nt)*4, 4)
            w_ = v(PRE + (n*5+nt)*4, 4) if (kind == "O" and n < NPRE) else buf(i, 4+nt)
            k(f"v_mfma_f32_16x16x32_bf16 {d}, {w_}, {buf(i,tj)}, {d}")
        if i == len(steps) - 1:
            last_mm = mm
            break
        for tj in range(4):
            for nt in range(5): mm(tj, nt)
        if i == GO:
            lgo = k.newlabel("go")
            k(f"s_cmp_lg_u32 s{sV}, 0\ns_cbranch_scc1 {lgo}")
            lds_set(k, F_GO, vT)
            k.label(lgo)
        j = i + ND
        if j < len(steps):
            if steps[j] == ("O", 0):
                if "noO" not in SKIP: lds_spin(k, F_O, vT, sT0)
                P.stamp()
            if AFIRST and j == 2:
                issue_addr(2); issue_w(2); spoll(1, F_S); issue_tok(2); gloads()
            else: issue(j)
    P.stamp()
    k(f"v_mul_u32_u24 v{vT+2}, 2560, v{vTok}\nv_lshl_add_u32 v{vT+2}, v{vG4}, 4, v{vT+2}")
    k(f"s_mul_i32 s{sT0}, s{sTok}, 2560\ns_mul_i32 s{sT1}, s{sJ}, 320\ns_add_u32 s{sT0}, s{sT0}, s{sT1}")
    for w in range(4):
        nxt = f"{name}_red{w+1}"
        if w < 3: k(f"s_cmp_lg_u32 s{sV}, {w}\ns_cbranch_scc1 {nxt}")
        k(f"v_add_u32 v{vT}, 40960, v{vL16}")
        oth = [tj for tj in range(4) if tj != w]
        def wr(tj):
            slot = (w - tj - 1) % 4
            for nt in range(5):
                off = tj*15360 + slot*5120 + nt*1024
                base, o2 = (vL16, off) if off < 40960 else (vT, off - 40960)
                k(f"ds_write_b128 v{base}, {v(ACC+(tj*5+nt)*4,4)} offset:{o2}")
        for idx, tj in enumerate(oth + [w]):
            for nt in range(5): last_mm(tj, nt)
            if idx >= 1: wr(oth[idx-1])
        k("s_waitcnt lgkmcnt(0)\ns_barrier")
        others = [tj for tj in range(4) if tj != w]
        for slot in range(3):
            for nt in range(5):
                off = w*15360 + slot*5120 + nt*1024
                base, o2 = (vL16, off) if off < 40960 else (vT, off - 40960)
                k(f"ds_read_b128 {v(ACC+(others[slot]*5+nt)*4,4)}, v{base} offset:{o2}")
        for nt in range(5):
            if nt == 0: k("s_waitcnt lgkmcnt(0)")
            d = ACC + (w*5+nt)*4
            for h in (0, 2):
                a0, a1, a2 = (ACC + (others[sl]*5+nt)*4 + h for sl in range(3))
                k(f"v_pk_add_f32 {v(a0,2)}, {v(a0,2)}, {v(a1,2)}\nv_pk_add_f32 {v(d+h,2)}, {v(d+h,2)}, {v(a2,2)}\nv_pk_add_f32 {v(d+h,2)}, {v(d+h,2)}, {v(a0,2)}")
            k(f"buffer_store_dwordx4 {v(d,4)}, v{vT+2}, {s(sOUT,4)}, s{sT0} offen offset:{nt*64}{OUTF}")
        k(f"s_branch {name}_fin")
        if w < 3: k.label(nxt)

def gen_ojob(k, name, P, P3):
    sWS = 8
    sV, sB, sJ, sH, sRho, sPar = 31, 27, 28, 29, 30, 53
    sT0, sT1, sT2 = 57, 58, 59
    vL16, vK0, vK1, vLane, vN, vG4, vTid, vGo = 80, 81, 82, 83, 84, 85, 87, 86
    KV, PQ, NON = 92, 0, 60
    k.label(f"{name}_ojob")
    jitter(k, "ojob")
    if OPRIO: k(f"s_setprio {OPRIO}")
    k(f"s_load_dwordx2 s[4:5], s[0:1], {A_WS}\ns_mov_b32 s{sV}, s{sW}")
    ident(k, sB, sJ, sH, sRho, sPar, sT0, sT1)
    k(f"v_mov_b32 v{vLane}, v194\nv_mov_b32 v{vTid}, v197\nv_lshlrev_b32 v{vL16}, 4, v{vLane}\nv_and_b32 v{vN}, 15, v{vLane}\nv_lshrrev_b32 v{vG4}, 4, v{vLane}")
    k(f"v_mov_b32 v{NON}, v250\nv_mov_b32 v{NON+1}, v251\nv_mov_b32 v{NON+2}, v250\nv_mov_b32 v{NON+3}, v251")
    k("s_waitcnt lgkmcnt(0)")
    srd(k, sWS, 4, WS_SIZE)
    k(f"v_mov_b32 v64, 0\nv_mov_b32 v65, 0\nv_mov_b32 v66, 0\nv_mov_b32 v67, 0")
    k(f"v_lshlrev_b32 v68, 4, v{vTid}\nv_add_u32 v68, {L3_ZERO}, v68\nv_mov_b32 v69, {L3_ZERO}\nv_cmp_gt_u32 vcc, 112, v{vTid}\nv_cndmask_b32 v68, v69, v68, vcc")
    k("ds_write_b128 v68, v[64:67]")
    SUM = 160
    k(f"v_lshlrev_b32 v{vK0}, 4, v{vTid}\nv_mov_b32 v{vK1}, 0x7fffffff\nv_cmp_gt_u32 vcc, 210, v{vTid}\nv_cndmask_b32 v{vK0}, v{vK1}, v{vK0}, vcc\ns_mov_b64 s[62:63], vcc")
    k(f"s_lshl_b32 s54, s{sH}, 16\ns_add_u32 s54, s54, {WS_KVT}\ns_mov_b32 s55, 0")
    lk, lkd, lk1 = k.newlabel("kvp"), k.newlabel("kvok"), k.newlabel("kv1")
    if KVEARLY: k(f"s_branch {lk1}")
    k.label(lk)
    for c in range(16):
        k(f"s_add_u32 s{sT1 + (c&1)}, s54, {c*4096}")
        k(f"buffer_load_dwordx4 {v(KV+4*c,4)}, v{vK0}, {s(sWS,4)}, s{sT1 + (c&1)} offen sc1")
    k.label(lk1)
    k("s_waitcnt vmcnt(0)\ns_mov_b64 s[6:7], 0")
    for c in range(16): k(f"v_cmp_ne_u64 vcc, {v(KV+4*c+2,2)}, {v(NON,2)}\ns_or_b64 s[6:7], s[6:7], vcc")
    k(f"s_and_b64 s[6:7], s[6:7], s[62:63]\ns_cmp_eq_u64 s[6:7], 0\ns_cbranch_scc1 {lkd}")
    k(f"s_add_u32 s55, s55, 1\ns_cmp_lt_u32 s55, {SPIN_MAX // 20}\ns_cbranch_scc1 {lk}")
    k.label(lkd)
    P.n = 1; P.stamp(); P3.n = 4; P3.stamp()
    lo = k.newlabel("noto1")
    k(f"s_cmp_lg_u32 s{sV}, 0\ns_cbranch_scc1 {lo}")
    k(f"s_lshl_b32 s{sT0}, s{sRho}, 5\nv_and_b32 v70, 31, v{vLane}\nv_add_u32 v70, s{sT0}, v70\nv_lshlrev_b32 v70, 7, v70\nv_add_u32 v70, {WS_FK}, v70")
    poll(k, sWS, 70, NON, 72, sT0, sleep=1)
    lds_set(k, F_O1, 72)
    k.label(lo)
    k(f"v_lshlrev_b32 v{SUM}, 16, v{KV}\nv_and_b32 v{SUM+1}, 0xffff0000, v{KV}\nv_lshlrev_b32 v{SUM+2}, 16, v{KV+1}\nv_and_b32 v{SUM+3}, 0xffff0000, v{KV+1}")
    for c in range(1, 16):
        lo_, hi = KV + 4*c, KV + 4*c + 1
        t = 70 + 4*(c & 1)
        k(f"v_lshlrev_b32 v{t}, 16, v{lo_}\nv_and_b32 v{t+1}, 0xffff0000, v{lo_}\nv_lshlrev_b32 v{t+2}, 16, v{hi}\nv_and_b32 v{t+3}, 0xffff0000, v{hi}")
        k(f"v_pk_add_f32 {v(SUM,2)}, {v(SUM,2)}, {v(t,2)}\nv_pk_add_f32 {v(SUM+2,2)}, {v(SUM+2,2)}, {v(t+2,2)}")
    lds_spin(k, F_O1, 72, sT0)
    k(f"s_lshl_b32 s{sT0}, s{sH}, 5\ns_lshl_b32 s{sT1}, s{sRho}, 2\ns_add_u32 s{sT0}, s{sT0}, s{sT1}\ns_add_u32 s{sT0}, s{sT0}, s{sV}")
    k(f"s_mul_i32 s{sT0}, s{sT0}, 5120\ns_add_u32 s{sT0}, s{sT0}, {WS_PQ}\ns_add_u32 s{sT1}, s{sT0}, 4096")
    for m in range(4): k(f"buffer_load_dwordx4 {v(PQ+4*m,4)}, v{vL16}, {s(sWS,4)}, s{sT0} offen offset:{m*1024} sc1")
    k(f"buffer_load_dwordx4 {v(PQ+16,4)}, v{vL16}, {s(sWS,4)}, s{sT1} offen sc1")
    k(f"s_lshl_b32 s{sT0}, s{sRho}, 2\ns_add_u32 s{sT0}, s{sT0}, s{sV}\ns_lshl_b32 s{sT0}, s{sT0}, 10\ns_add_u32 s{sT0}, s{sT0}, {WS_G}")
    k(f"v_lshrrev_b32 v74, 2, v{vN}\nv_lshlrev_b32 v74, 7, v74\nv_and_b32 v75, 1, v{vN}\nv_lshl_add_u32 v74, v75, 4, v74\nv_bfe_u32 v75, v{vN}, 1, 1\nv_lshl_add_u32 v74, v75, 2, v74")
    k(f"v_lshrrev_b32 v75, 1, v{vG4}\nv_lshl_add_u32 v74, v75, 9, v74\nv_and_b32 v75, 1, v{vG4}\nv_lshl_add_u32 v74, v75, 3, v74")
    k(f"buffer_load_dword v{vGo}, v74, {s(sWS,4)}, s{sT0} offen sc1")
    if not AFIRST: k(f"v_mov_b32 v70, {C_OL}\nv_mov_b32 v71, 1\ns_mov_b64 s[60:61], exec\ns_mov_b64 exec, 1\nds_add_u32 v70, v71\ns_mov_b64 exec, s[60:61]")
    k(f"v_cvt_pk_bf16_f32 v{KV}, v{SUM}, v{SUM+1}\nv_cvt_pk_bf16_f32 v{KV+1}, v{SUM+2}, v{SUM+3}")
    k(f"v_lshlrev_b32 v{vK1}, 3, v{vTid}\nv_add_u32 v{vK1}, {L3_KV}, v{vK1}\nv_mov_b32 v69, {L_CNT + 64}\nv_cmp_gt_u32 vcc, 210, v{vTid}\nv_cndmask_b32 v{vK1}, v69, v{vK1}, vcc")
    k(f"ds_write_b64 v{vK1}, {v(KV,2)}")
    k("s_waitcnt lgkmcnt(0)")
    k(f"v_mov_b32 v70, {C_KV}\nv_mov_b32 v71, 1\ns_mov_b64 s[60:61], exec\ns_mov_b64 exec, 1\nds_add_u32 v70, v71\ns_mov_b64 exec, s[60:61]")
    lds_spin(k, C_KV, 70, sT0, target=4)
    P.stamp()
    vA = KV + 8
    k(f"v_lshrrev_b32 v{vK1}, 2, v{vN}\nv_and_b32 v{vA}, 3, v{vN}\nv_mul_u32_u24 v{vA}, 80, v{vA}\nv_add_u32 v{vA}, {L3_KV}, v{vA}")
    k(f"v_cmp_eq_u32 vcc, v{vK1}, v{vG4}\nv_mov_b32 v{vA+1}, {L3_ZERO}\nv_cndmask_b32 v{vA}, v{vA+1}, v{vA}, vcc")
    k(f"v_mov_b32 v{vA+2}, {L3_KV + 1600}\nv_cndmask_b32 v{vA+2}, v{vA+1}, v{vA+2}, vcc")
    AOP, NUM = KV + 12, 20
    order = [(i, m) for i in range(6) for m in range(5)]
    def rd(n):
        i, m = order[n]
        if i < 5: k(f"ds_read_b128 {v(AOP + 4*(n % 4), 4)}, v{vA} offset:{320*i + 16*m}")
        else: k(f"ds_read_b128 {v(AOP + 4*(n % 4), 4)}, v{vA+2} offset:{16*m}")
    for n in range(3): rd(n)
    k("s_waitcnt vmcnt(1)")
    for n in range(30):
        if n + 3 < 30: rd(n + 3)
        k(f"s_waitcnt lgkmcnt({min(3, 29 - n)})")
        i, m = order[n]
        k(f"v_mfma_f32_16x16x32_bf16 {v(NUM+4*i,4)}, {v(AOP + 4*(n % 4), 4)}, {v(PQ+4*m,4)}, {'0' if m == 0 else v(NUM + 4*i, 4)}")
    k("s_waitcnt vmcnt(0)")
    DEN = NUM + 20
    k(f"v_add_f32 v{DEN}, 0x358637bd, v{DEN}\nv_rcp_f32 v{DEN}, v{DEN}\nv_sub_f32 v{vGo}, 1.0, v{vGo}\nv_mul_f32 v{DEN}, v{DEN}, v{vGo}")
    for d in range(0, 20, 2): k(f"v_pk_mul_f32 {v(NUM+d,2)}, {v(NUM+d,2)}, {v(DEN,2)} op_sel_hi:[1,0]")
    OP = 48
    for d in range(10): k(f"v_cvt_pk_bf16_f32 v{OP+d}, v{NUM+2*d}, v{NUM+2*d+1}")
    k(f"s_lshl_b32 s{sT0}, s{sRho}, 2\ns_add_u32 s{sT0}, s{sT0}, s{sV}\ns_mul_i32 s{sT0}, s{sT0}, {4*20480}")
    k(f"s_and_b32 s{sT1}, s{sH}, 3\ns_lshl_b32 s{sT1}, s{sT1}, 8\ns_add_u32 s{sT0}, s{sT0}, s{sT1}\ns_add_u32 s{sT0}, s{sT0}, {WS_O}")
    k(f"v_mul_u32_u24 v{vK1}, 20480, v{vG4}\nv_lshl_add_u32 v{vK1}, v{vN}, 4, v{vK1}")
    k(f"s_lshr_b32 s{sT1}, s{sH}, 2\ns_lshl_b32 s{sT2}, s{sT1}, 11\ns_add_u32 s{sT2}, s{sT2}, s{sT0}")
    k(f"buffer_store_dwordx4 {v(OP,4)}, v{vK1}, {s(sWS,4)}, s{sT2} offen sc1")
    k(f"buffer_store_dwordx4 {v(OP+4,4)}, v{vK1}, {s(sWS,4)}, s{sT2} offen offset:1024 sc1")
    k(f"s_and_b32 s{sT2}, s{sT1}, 1\ns_lshl_b32 s{sT2}, s{sT2}, 9\ns_lshr_b32 s{sT1}, s{sT1}, 1\ns_add_u32 s{sT1}, s{sT1}, 16\ns_lshl_b32 s{sT1}, s{sT1}, 10")
    k(f"s_add_u32 s{sT2}, s{sT2}, s{sT1}\ns_add_u32 s{sT2}, s{sT2}, s{sT0}\ns_and_b32 s{sT1}, s{sH}, 3\ns_lshl_b32 s{sT1}, s{sT1}, 7\ns_sub_u32 s{sT2}, s{sT2}, s{sT1}")
    k(f"v_mul_u32_u24 v{vK0}, 20480, v{vG4}\nv_lshl_add_u32 v{vK0}, v{vN}, 3, v{vK0}")
    k(f"buffer_store_dwordx2 {v(OP+8,2)}, v{vK0}, {s(sWS,4)}, s{sT2} offen sc1")
    k("s_waitcnt vmcnt(0)")
    P.stamp()
    if DBG:
        lx = k.newlabel("dbgx")
        arrive(k, C_O, 99, 70, sT0, lx)
        k.label(lx)
        k(f"s_lshl_b32 s{sT1}, s2, 2\ns_add_u32 s{sT1}, s{sT1}, s{sV}\ns_lshl_b32 s{sT1}, s{sT1}, 4\ns_add_u32 s{sT1}, s{sT1}, 0x1190000")
        k(f"v_mov_b32 v75, 0\nv_mov_b32 v76, s{sT0}\nv_mov_b32 v77, v60\nv_mov_b32 v78, v240\nv_mov_b32 v79, v61")
        k(f"buffer_store_dwordx4 v[76:79], v75, {s(sWS,4)}, s{sT1} offen")
        k(f"s_cmp_lg_u32 s{sT0}, 3\ns_cbranch_scc1 {name}_fin")
    else:
        arrive(k, C_O, 3, 70, sT0, f"{name}_fin")
    k(f"s_lshl_b32 s{sT0}, s{sRho}, 12\ns_add_u32 s{sT0}, s{sT0}, {WS_OF}\ns_lshl_b32 s{sT1}, s{sH}, 7\ns_add_u32 s{sT1}, s{sT1}, s{sT0}")
    flag_store(k, sWS, sT1, NON, vLane, 70)
    if DBG:
        k(f"s_waitcnt vmcnt(0)\nv_mov_b32 v75, 0\nbuffer_load_dwordx2 v[76:77], v75, {s(sWS,4)}, s{sT1} offen sc1\ns_waitcnt vmcnt(0)")
        k(f"v_mov_b32 v78, s{sT1}\nv_mov_b32 v79, v70\ns_lshl_b32 s{sT0}, s2, 4\ns_add_u32 s{sT0}, s{sT0}, 0x11A0000")
        k(f"buffer_store_dwordx4 v[76:79], v75, {s(sWS,4)}, s{sT0} offen\ns_waitcnt vmcnt(0)")
    if "noO" in SKIP: k(f"s_branch {name}_fin")
    lds_spin(k, F_GO, 70, sT1, sleep=4)
    k(f"s_lshr_b32 s{sT0}, s{sB}, 2\ns_lshl_b32 s{sT0}, s{sT0}, 12\ns_add_u32 s{sT0}, s{sT0}, {WS_OF}")
    k(f"v_and_b32 v70, 31, v{vLane}\nv_lshlrev_b32 v70, 7, v70\nv_add_u32 v70, s{sT0}, v70")
    poll(k, sWS, 70, NON, 72, sT0, sleep=8)
    lds_set(k, F_O, 72)
    k("s_waitcnt lgkmcnt(0)")
    P.stamp()
    k(f"s_branch {name}_fin")

def gen_fused(name="kf_kernel", prof=False, rot="T4", GO=3, NPRE=3, exp=None, prof1=False, prof3=False, NL=0, gate_ol=False, light=False, oprio=0, bprio=0, fwearly=False, xfirst=False, skip=(), thr=0, code_pf=False, nb=3, grot=True, ssleep=0, afirst=False, kvearly=False, outf="", xmap="8x4", wsbase=0, dmaf=None, perm=0, jit=None):
    global JIT
    JIT = jit
    k1.DMAF = dmaf or {}
    import k3
    k3.WSBASE = wsbase
    k1.XMAP = xmap
    global OUTF
    OUTF = (" " + outf) if outf else ""
    global GROT, SSLEEP, AFIRST, KVEARLY
    AFIRST = afirst; KVEARLY = kvearly
    k1.NBAR = nb; GROT = grot; SSLEEP = ssleep
    global SKIP, THR
    SKIP = skip; THR = thr
    k1.XFIRST = xfirst
    global GATE_OL, OPRIO, FWEARLY
    FWEARLY = fwearly
    GATE_OL = gate_ol; OPRIO = oprio; k1.BPRIO = bprio
    k = Kern(name, nv=256, na=0)
    P = Prof(k, prof, base=64)
    if light:
        class Light(Prof):
            def stamp(self):
                if self.n in (0, 7): Prof.stamp(self)
                else: self.n += 1
        P = Light(k, True, base=64); prof = True
    P3 = P if prof3 else Prof(k, False)
    k1.FUSED = Hooks(name, P3); k1.WT = " sc1"; k1.CODE_PF = code_pf; k1.NEXT = None
    k(f"s_cmp_ge_u32 s2, 256\ns_cbranch_scc1 {name}_end")
    if perm == 1: k("s_mul_i32 s2, s2, 37\ns_add_u32 s2, s2, 11\ns_and_b32 s2, s2, 255")
    if perm == 2: k("s_brev_b32 s2, s2\ns_lshr_b32 s2, s2, 24")
    if perm == 3: k("s_mul_i32 s2, s2, 9\ns_add_u32 s2, s2, 250\ns_and_b32 s2, s2, 255")
    P.start(); P.stamp()
    decode(k, rot)
    jitter(k, "start")
    tA, tB = T("A"), T("B")
    k(f"s_and_b32 s4, s{sQ}, 1\ns_cmp_ge_u32 s{sW}, 4\ns_cbranch_scc1 {name}_loaders")
    k(f"s_cmp_eq_u32 s4, 0\ns_cbranch_scc1 {name}_cpA\ns_branch {name}_cpB")
    k.label(f"{name}_loaders")
    k(f"s_cmp_eq_u32 s4, 0\ns_cbranch_scc0 {name}_ldB")
    Pn = P if prof1 else Prof(k, False)
    P2 = Prof(k, False) if (prof1 or prof3) else P
    n0 = P.n
    for t in (tA, tB):
        Pn.n = n0
        issue = gen_loader(k, t, name, Pn, exp)
        lh = k.newlabel("helper")
        k(f"s_cmp_eq_u32 s{sW}, 4\ns_cbranch_scc1 {lh}")
        side_mid(k, name, t, issue)
        k.label(lh)
        k("s_setprio 3")
        gen_helper_early(k, t)
        k("s_waitcnt vmcnt(11)\ns_barrier")
        gen_helper_tables(k, t)
        k("s_waitcnt vmcnt(1)\ns_barrier\ns_waitcnt vmcnt(0)")
        Pn.stamp()
        jitter(k, "helper")
        gen_helper(k, t, name, Pn)
        k(f"s_branch {name}_gemm")
    k.label(f"{name}_sidedone")
    k1.FUSED.side_done(k, name)
    for t in (tA, tB):
        Pn.n = n0
        gen_compute(k, t, name, Pn, None, exp)
    P2.n = 1
    gen_gemm(k, name, P2, GO, NPRE, P3, NL)
    gen_ojob(k, name, P2, P3)
    k.label(f"{name}_fin")
    if prof:
        P.n = 7
        k(f"s_load_dwordx2 s[4:5], s[0:1], {A_WS}\ns_waitcnt vmcnt(0) lgkmcnt(0)")
        srd(k, 8, 4, WS_SIZE)
        P.stamp()
        P.flush(8, sW, 250, 62)
    k.label(f"{name}_end")
    k("s_endpgm")
    k1.FUSED = None; k1.WT = ""
    k.lds = LDS_K1
    return k

if __name__ == "__main__":
    import sys
    sys.path.insert(0, "exp")
    from build import build
    DBG = len(sys.argv) > 1
    if DBG: SPIN_MAX = 40000
    for tag, kw in (("", {}), ("_prof", dict(prof=True)), ("_prof1", dict(prof=True, prof1=True)), ("_prof3", dict(prof=True, prof3=True)), ("_profL", dict(prof=True, NL=6))):
        k = gen_fused(**kw)
        open(f"kf{tag}.s", "w").write(module([f"@launch kernel={k.name} grid=(256,1,1) block=(512,1,1) lds={k.lds}"], [k]))
        build(f"kf{tag}.s", f"kf{tag}.co", k.name, check=(tag == ""))
        print(tag, "built, pads:", k.npad, "lines:", len(k.lines))
```

```python
WS_S   = 0x000000
WS_PQ  = 0x500000
WS_CF  = 0xA00000
WS_WF  = 0xC00000
WS_O   = 0xD00000
WS_KVP = 0x1000000
WS_G   = 0x1100000
WS_NONCE = 0x1108000
WS_OF  = 0x1140000
WS_E   = 0x1110000
WS_FW  = 0x1150000
WS_F1  = 0x1158000
WS_FK  = 0x1160000
WS_KVT = 0x1200000
WS_SIZE = 0x1400000
A_X, A_LRE, A_LIM, A_BRE, A_BIM, A_CRE, A_CIM, A_LOGDT, A_DSKIP, A_BX, A_WQKV, A_WPHI, A_WO, A_GATE, A_OUT, A_DBG, A_WS = [8*i for i in range(17)]
```

```python
import sys
sys.path.insert(0, "gen"); sys.path.insert(0, "exp")
from ag import *
import kf
from build import build
NAME = "gated_mix__ssm_conv_s5__linear_kernel_hedgehog__prompt"
def make(path, kw={}):
    a = kf.gen_fused(name=NAME + "_kernel", **kw)
    ref = open(f"cdna_kernels/{NAME}.s.ref").read().split("\n")
    hdr = []
    for l in ref:
        if l.startswith("; Override launch"): break
        hdr.append(l[2:] if l.startswith("; ") else l[1:])
    hdr += [f"@launch grid=(256,1,1) block=(512,1,1) lds={a.lds}",
            "One persistent launch, 256 workgroups of 8 waves (one per CU).",
            "Phase 1 (token tile of 128 x one column group): waves 4-7 stream x / weights into an LDS ring, waves 0-3 run the",
            "  q,k,v and SSM-drive GEMMs, the hedgehog feature maps, the kv partial sums and an exact chunked scan; tile carries are",
            "  exchanged through tagged 16-byte granules in d_ws (tag = launch nonce elected in d_debug).",
            "Phase 2 (64 tokens x 80 columns, split-K over waves 4-7): out = g*(S C'^T + x*D) + ((1-g) o) wo; waves 0-3 build the",
            "  normalised linear-attention output o.  Hand-offs between workgroups: write-through stores, flag lines, sc1 loads."]
    txt = module(hdr, [a])
    open(path, "w").write(txt)
    build(path, path.replace(".s", ".co"), a.name)
    print(path, len(txt), "bytes; pads", a.npad)
if __name__ == "__main__":
    import os
    os.makedirs("var", exist_ok=True)
    for spec in sys.argv[1:]:
        tag, kw = spec.split("=", 1)
        make(f"var/{tag}.s", eval(kw))
```
